```python
import torch

def _softmax(x, axis=-1):
    return torch.softmax(x, dim=axis)
def _gelu(x):
    return torch.nn.functional.gelu(x, approximate="tanh")
def _silu(x):
    return torch.nn.functional.silu(x)
def _sigmoid(x):
    return torch.sigmoid(x)
def _layernorm(x, axis=-1, eps=1e-5):
    m = x.mean(dim=axis, keepdim=True)
    v = x.var(dim=axis, keepdim=True, unbiased=False)
    return (x - m) / torch.sqrt(v + eps)
def _scatter_add(tgt, idx, src, axis=0):
    return tgt.clone().index_add_(axis, idx, src)
def _segment_sum(src, seg, n):
    out = torch.zeros((n,) + src.shape[1:], dtype=src.dtype)
    return out.index_add_(0, seg, src)
def _pad(x, pw):
    flat = tuple(v for pair in reversed(pw) for v in pair)
    return torch.nn.functional.pad(x, flat)

kernel_name = 'standalone__edge_featured_mpnn_mpnn__graph'

def setup_inputs():

    _w = (lambda a: (lambda t: t.to(torch.bfloat16) if t.is_floating_point() else t)(torch.as_tensor(a)))
    N, deg, D, De = 25000, 16, 128, max(0, 1)
    E = N * deg
    H = 2 * D
    return {
        "x": _w((lambda *s: torch.randn(*s, dtype=torch.bfloat16) * 0.05)(N, D)),
        "e_attr": _w((lambda *s: torch.randn(*s, dtype=torch.bfloat16) * 1.6)(E, De)),
        "src": _w((lambda lo, hi, *s: torch.randint(lo, hi, s))(0, N, E).to(torch.int64)),
        "dst": _w((lambda lo, hi, *s: torch.randint(lo, hi, s))(0, N, E).to(torch.int64)),
        "w1": _w((lambda *s: torch.randn(*s, dtype=torch.bfloat16) * 1.6)(2 * D + De, H) * (1.0 / (2 * D + De) ** 0.5)),
        "b1": _w((lambda *s: torch.randn(*s, dtype=torch.bfloat16) * 1.6)(H) * 0.01),
        "w2": _w((lambda *s: torch.randn(*s, dtype=torch.bfloat16) * 0.05)(H, D) * (1.0 / H ** 0.5)),
        "b2": _w((lambda *s: torch.randn(*s, dtype=torch.bfloat16) * 0.05)(D) * 0.01),
    }

def reference(x, e_attr, src, dst, w1, b1, w2, b2):
    N, D = x.shape
    h_src = x[src]
    h_dst = x[dst]
    m_in = torch.concatenate([h_src, h_dst, e_attr], axis=-1)
    h = _silu(m_in @ w1 + b1)
    msg = h @ w2 + b2
    return _segment_sum(msg, dst, N)
```

```python
import sys, struct

N, E = 25000, 400000
NPB = 98
CH = 3128
RS = 36864
WS_P    = 0
WS_REC  = 0x0D00000
WS_OVF  = 0x1800000
WS_OVFC = 0x2000000
WS_FRAG = 0x2010000
LOG2E = 1.4426950408889634
LN2 = 0.6931471805599453
def f32(x): return "0x%08x" % struct.unpack("<I", struct.pack("<f", x))[0]

out = []
def e(s=""):
    for line in s.split("\n"):
        out.append("    " + line.strip() if line.strip() and not line.strip().endswith(":") else line.strip())
def c(s): out.append("    ; " + s)
def v(a, n=1): return f"v{a}" if n == 1 else f"v[{a}:{a+n-1}]"
def s(a, n=1): return f"s{a}" if n == 1 else f"s[{a}:{a+n-1}]"

STAMP = "--stamp" in sys.argv
def stamp(i, sreg_base=92):
    if STAMP:
        e(f"s_memtime s[{sreg_base}:{sreg_base+1}]\ns_waitcnt lgkmcnt(0)\nv_writelane_b32 v127, s{sreg_base}, {i}")

K1_CNT, K1_OC, K1_ST, K1_X, K1_W = 0, 512, 1024, 35840, 68608
K1_LDS = K1_W + 65536

def x_tile_dma(sSRD, sW, vLane, vT0, vT1, ldsbase, sTmp):
    c("x tile -> LDS (2 DMA per wave), chunk p of a row holds source chunk p ^ (row & 15)")
    e(f"""
    v_lshrrev_b32 {v(vT0)}, 4, {v(vLane)}
    s_and_b32 {s(sTmp)}, {s(sW)}, 1
    s_lshl_b32 {s(sTmp)}, {s(sTmp)}, 3
    v_add_u32 {v(vT0)}, {s(sTmp)}, {v(vT0)}
    v_xor_b32 {v(vT0)}, {v(vT0)}, {v(vLane)}
    v_and_b32 {v(vT0)}, 15, {v(vT0)}
    v_and_b32 {v(vT1)}, 48, {v(vLane)}
    v_or_b32 {v(vT0)}, {v(vT0)}, {v(vT1)}
    v_lshlrev_b32 {v(vT0)}, 4, {v(vT0)}
    v_xor_b32 {v(vT1)}, 64, {v(vT0)}
    """)

def gen_k1():
    e("k1_kernel:")
    sW, sC, sHB, sLim, sT, sT2 = 3, 4, 5, 6, 7, 8
    sEM = 10
    sX = 36
    sP = 40
    sRB = 44
    sM = 48
    sOV = 56
    sK = 58
    sQ0 = 60
    sL2E = 62
    sFB = 64
    vLane = 1
    vD, vS, vE = 4, 8, 12
    vA, vB = 2, 3
    vXo0, vXo1, vWe, vWo = 14, 15, 16, 17
    e(f"""
    s_cmp_ge_u32 s2, 256
    s_cbranch_scc1 k1_end
    s_load_dwordx16 s[16:31], s[0:1], 0
    s_load_dwordx2 s[32:33], s[0:1], 80
    v_lshrrev_b32 {v(vA)}, 6, v0
    v_and_b32 {v(vLane)}, 63, v0
    v_readfirstlane_b32 {s(sW)}, {v(vA)}
    s_lshr_b32 {s(sC)}, s2, 1
    s_and_b32 {s(sHB)}, s2, 1
    s_mul_i32 {s(sT)}, {s(sC)}, {CH*4}
    v_lshlrev_b32 {v(vA)}, 4, v0
    v_add_u32 {v(vA)}, {s(sT)}, {v(vA)}
    v_lshrrev_b32 {v(vB)}, 1, {v(vA)}
    s_movk_i32 {s(sLim)}, {CH//4}
    s_cmp_eq_u32 {s(sC)}, 127
    s_cselect_b32 {s(sLim)}, {(E-127*CH)//4}, {s(sLim)}
    v_cmp_gt_u32 {s(sEM,2)}, {s(sLim)}, v0
    """)
    x_tile_dma(sX, sW, vLane, vXo0, vXo1, K1_X, sT2)
    c("W1a DMA offsets: 64-B block p of row k holds source block p ^ (k & 3)")
    e(f"""
    v_lshlrev_b32 {v(vWe)}, 4, {v(vLane)}
    v_and_b32 {v(vWo)}, 32, {v(vLane)}
    v_lshlrev_b32 {v(vWo)}, 1, {v(vWo)}
    v_xor_b32 {v(vWe)}, {v(vWe)}, {v(vWo)}
    s_lshl_b32 {s(sT)}, {s(sW)}, 12
    v_add_u32 {v(vWe)}, {s(sT)}, {v(vWe)}
    v_xor_b32 {v(vWo)}, 0x80, {v(vWe)}
    """)
    c("zero the bin counters (+ overflow counter): threads 0..255 write one dword each")
    e(f"""
    v_lshlrev_b32 v18, 2, v0
    v_mov_b32 v19, 0
    s_cmp_ge_u32 {s(sW)}, 4
    s_cbranch_scc1 k1_nozero
    ds_write_b32 v18, v19
    k1_nozero:
    s_mul_i32 {s(sT)}, s2, {NPB*256}
    s_movk_i32 {s(sX+2)}, {NPB*256}
    s_cmp_eq_u32 s2, 255
    s_cselect_b32 {s(sX+2)}, {(N-255*NPB)*256}, {s(sX+2)}
    s_mov_b32 {s(sX+3)}, 0x20000
    s_lshl_b32 {s(sP+2)}, {s(sX+2)}, 1
    s_mov_b32 {s(sP+3)}, 0x20000
    s_waitcnt lgkmcnt(0)
    s_mov_b64 exec, {s(sEM,2)}
    s_cbranch_execz k1_noedge
    global_load_dwordx4 {v(vD,4)}, {v(vA)}, s[22:23]
    global_load_dwordx4 {v(vS,4)}, {v(vA)}, s[20:21]
    global_load_dwordx2 {v(vE,2)}, {v(vB)}, s[18:19]
    k1_noedge:
    s_mov_b64 exec, -1
    s_add_u32 {s(sX)}, s16, {s(sT)}
    s_addc_u32 {s(sX+1)}, s17, 0
    s_lshl_b32 {s(sT2)}, {s(sW)}, 11
    s_add_u32 m0, {s(sT2)}, {K1_X}
    s_lshl_b32 {s(sT)}, {s(sT)}, 1
    buffer_load_dwordx4 {v(vXo0)}, {s(sX,4)}, {s(sT2)} offen lds
    buffer_load_dwordx4 {v(vXo1)}, {s(sX,4)}, {s(sT2)} offen offset:1024 lds
    s_lshl_b32 {s(sT2)}, {s(sW)}, 12
    s_add_u32 m0, {s(sT2)}, {K1_W}
    s_add_u32 {s(sP)}, s32, {s(sT)}
    global_load_lds_dwordx4 {v(vWe)}, s[24:25]
    global_load_lds_dwordx4 {v(vWo)}, s[24:25] offset:1024
    global_load_lds_dwordx4 {v(vWe)}, s[24:25] offset:2048
    global_load_lds_dwordx4 {v(vWo)}, s[24:25] offset:3072
    s_addc_u32 {s(sP+1)}, s33, 0
    s_barrier
    """)
    c("record base: ws + WS_REC + hb*128*RS + c*256")
    e(f"""
    s_mul_i32 {s(sT)}, {s(sHB)}, {128*RS}
    s_lshl_b32 {s(sT2)}, {s(sC)}, 8
    s_add_u32 {s(sT)}, {s(sT)}, {s(sT2)}
    s_add_u32 {s(sT)}, {s(sT)}, {WS_REC}
    s_add_u32 {s(sRB)}, s32, {s(sT)}
    s_addc_u32 {s(sRB+1)}, s33, 0
    s_lshl_b32 {s(sHB)}, {s(sHB)}, 7
    s_movk_i32 {s(sK)}, -98
    s_movk_i32 {s(sK+1)}, 272
    s_cmp_eq_u32 {s(sW)}, 15
    s_cbranch_scc1 k1_frag
    s_mov_b64 exec, {s(sEM,2)}
    s_cbranch_execz k1_sortdone
    v_mov_b32 v19, 8
    s_waitcnt vmcnt(6)
    """)
    vBin, vR, vRk, vT = 20, 24, 32, 36
    for i in range(4):
        e(f"v_mul_u32_u24 {v(vBin+i)}, 42800, {v(vD+i)}")
    for i in range(4):
        e(f"v_lshrrev_b32 {v(vBin+i)}, 22, {v(vBin+i)}")
    for i in range(4):
        e(f"v_mad_i32_i24 {v(vD+i)}, {v(vBin+i)}, {s(sK)}, {v(vD+i)}")
    for i in range(4):
        e(f"v_subrev_u32 {v(vBin+i)}, {s(sHB)}, {v(vBin+i)}")
    for i in range(4):
        e(f"v_cmp_gt_u32 vcc, 0x80, {v(vBin+i)}")
        e(f"v_lshlrev_b32 {v(vT+i)}, 2, {v(vBin+i)}")
        e(f"s_mov_b64 {s(sM+2*i,2)}, vcc")
    for i in range(4):
        e(f"s_mov_b64 exec, {s(sM+2*i,2)}")
        e(f"ds_add_rtn_u32 {v(vRk+i)}, {v(vT+i)}, v19 offset:{K1_CNT}")
    e(f"s_mov_b64 exec, {s(sEM,2)}")
    for i in range(4):
        e(f"v_mul_u32_u24 {v(vT+i)}, 335, {v(vS+i)}")
        e(f"v_lshlrev_b32 {v(vR+2*i)}, 9, {v(vS+i)}")
    for i in range(4):
        e(f"v_lshrrev_b32 {v(vT+i)}, 20, {v(vT+i)}")
        if i % 2 == 0: e(f"v_lshlrev_b32 {v(vS+i)}, 16, {v(vE+i//2)}")
        else:          e(f"v_and_b32 {v(vS+i)}, 0xffff0000, {v(vE+i//2)}")
    for i in range(4):
        e(f"v_lshl_add_u32 {v(vT+i)}, {v(vD+i)}, 3, {v(vT+i)}")
    for i in range(4):
        e(f"v_lshl_or_b32 {v(vR+2*i+1)}, {v(vT+i)}, 2, {v(vS+i)}")
    e(f"s_mov_b64 {s(sOV,2)}, 0")
    e("s_waitcnt lgkmcnt(0)")
    for i in range(4):
        e(f"""
        s_mov_b64 exec, {s(sM+2*i,2)}
        v_cmp_le_u32 vcc, 248, {v(vRk+i)}
        v_mad_u32_u24 {v(vT+i)}, {v(vBin+i)}, {s(sK+1)}, {v(vRk+i)}
        s_andn2_b64 exec, exec, vcc
        s_or_b64 {s(sOV,2)}, {s(sOV,2)}, vcc
        ds_write_b64 {v(vT+i)}, {v(vR+2*i,2)} offset:{K1_ST+8}
        """)
    e(f"""
    s_cmp_eq_u64 {s(sOV,2)}, 0
    s_cbranch_scc1 k1_sortdone
    """)
    c("rare: segment overflow -> append to this workgroup's overflow list, bin in the low bits of dword 0")
    e(f"""
    s_lshl_b32 {s(sT)}, s2, 15
    s_add_u32 {s(sT)}, {s(sT)}, {WS_OVF}
    s_add_u32 {s(sFB)}, s32, {s(sT)}
    s_addc_u32 {s(sFB+1)}, s33, 0
    s_mov_b64 exec, -1
    v_mov_b32 v18, {K1_OC}
    """)
    for i in range(4):
        e(f"""
        s_mov_b64 exec, {s(sM+2*i,2)}
        v_cmp_le_u32 vcc, 248, {v(vRk+i)}
        s_and_b64 exec, exec, vcc
        s_cbranch_execz k1_ov{i}
        ds_add_rtn_u32 {v(vT+i)}, v18, v19
        v_add_u32 {v(vBin+i)}, {s(sHB)}, {v(vBin+i)}
        v_or_b32 {v(vR+2*i)}, {v(vR+2*i)}, {v(vBin+i)}
        s_waitcnt lgkmcnt(0)
        global_store_dwordx2 {v(vT+i)}, {v(vR+2*i,2)}, {s(sFB,2)}
        k1_ov{i}:
        """)
    e("s_branch k1_sortdone")
    c("wave 15 of workgroups 0..127: build one MFMA A-fragment of W1b^T (0..63) or W2^T (64..127)")
    e(f"""
    k1_frag:
    s_cmp_ge_u32 s2, 128
    s_cbranch_scc1 k1_sortdone
    v_bfe_u32 v20, {v(vLane)}, 2, 1
    v_lshlrev_b32 v20, 5, v20
    v_bfe_u32 v21, {v(vLane)}, 3, 2
    v_lshl_add_u32 v20, v21, 3, v20
    v_and_b32 v21, 3, {v(vLane)}
    v_lshl_add_u32 v20, v21, 1, v20
    v_lshrrev_b32 v21, 5, {v(vLane)}
    s_cmp_ge_u32 s2, 64
    s_cbranch_scc1 k1_frag2
    s_and_b32 {s(sT)}, s2, 7
    s_lshl_b32 {s(sT)}, {s(sT)}, 13
    s_lshr_b32 {s(sT2)}, s2, 3
    s_lshl_b32 {s(sT2)}, {s(sT2)}, 6
    s_add_u32 {s(sT)}, {s(sT)}, {s(sT2)}
    s_add_u32 {s(sT)}, {s(sT)}, 65536
    v_lshl_add_u32 v20, v21, 12, v20
    v_add_u32 v20, {s(sT)}, v20
    """)
    for m in range(8):
        e(f"global_load_ushort {v(24+m)}, v20, s[24:25] offset:{m*512}")
    e(f"""
    s_branch k1_frag3
    k1_frag2:
    s_and_b32 {s(sT)}, s2, 15
    s_lshl_b32 {s(sT)}, {s(sT)}, 12
    s_bfe_u32 {s(sT2)}, s2, 0x20004
    s_lshl_b32 {s(sT2)}, {s(sT2)}, 6
    s_add_u32 {s(sT)}, {s(sT)}, {s(sT2)}
    v_lshl_add_u32 v20, v21, 11, v20
    v_add_u32 v20, {s(sT)}, v20
    """)
    for m in range(8):
        e(f"global_load_ushort {v(24+m)}, v20, s[28:29] offset:{m*256}")
    e(f"""
    k1_frag3:
    s_lshl_b32 {s(sT)}, s2, 10
    s_add_u32 {s(sT)}, {s(sT)}, {WS_FRAG}
    v_lshlrev_b32 v21, 4, {v(vLane)}
    v_add_u32 v21, {s(sT)}, v21
    s_waitcnt vmcnt(0)
    v_lshl_or_b32 v32, v25, 16, v24
    v_lshl_or_b32 v33, v27, 16, v26
    v_lshl_or_b32 v34, v29, 16, v28
    v_lshl_or_b32 v35, v31, 16, v30
    global_store_dwordx4 v21, v[32:35], s[32:33]
    k1_sortdone:
    s_mov_b64 exec, -1
    """)
    vSA, vCA, vG0, vG1, vQ16 = 2, 3, 4, 5, 6
    vTA = 7
    vBA = 8
    vPO = 16
    c("write-out addresses")
    e(f"""
    v_lshrrev_b32 v18, 4, v0
    v_and_b32 v19, 15, v0
    v_lshlrev_b32 v19, 4, v19
    v_mad_u32_u24 {v(vSA)}, v18, {s(sK+1)}, v19
    v_lshlrev_b32 {v(vCA)}, 2, v18
    s_mov_b32 {s(sT)}, {RS}
    v_mad_u32_u24 {v(vG0)}, v18, {s(sT)}, v19
    v_add_u32 {v(vG1)}, {64*RS}, {v(vG0)}
    v_and_b32 {v(vQ16)}, 0xc0, v19
    v_cmp_eq_u32 {s(sQ0,2)}, 0, v19
    """)
    c("A-fragment (W1a^T) transpose-read base")
    e(f"""
    s_and_b32 {s(sT)}, {s(sW)}, 7
    v_bfe_u32 v18, {v(vLane)}, 2, 2
    v_xor_b32 v19, {s(sT)}, v18
    v_lshlrev_b32 {v(vTA)}, 6, v19
    v_lshl_add_u32 {v(vTA)}, v18, 9, {v(vTA)}
    v_lshrrev_b32 v18, 5, {v(vLane)}
    v_lshl_add_u32 {v(vTA)}, v18, 12, {v(vTA)}
    v_and_b32 v19, 1, {v(vLane)}
    v_lshl_add_u32 {v(vTA)}, v19, 5, {v(vTA)}
    v_bfe_u32 v19, {v(vLane)}, 4, 1
    v_lshl_add_u32 {v(vTA)}, v19, 4, {v(vTA)}
    v_bfe_u32 v19, {v(vLane)}, 1, 1
    v_lshl_add_u32 {v(vTA)}, v19, 3, {v(vTA)}
    v_add_u32 {v(vTA)}, {K1_W}, {v(vTA)}
    """)
    c("B-fragment (x rows) addresses; P store offset")
    e(f"""
    v_and_b32 v19, 31, {v(vLane)}
    s_lshr_b32 {s(sT2)}, {s(sW)}, 3
    s_lshl_b32 {s(sT2)}, {s(sT2)}, 6
    v_add_u32 v19, {s(sT2)}, v19
    v_lshlrev_b32 {v(vPO)}, 9, v19
    v_lshl_add_u32 {v(vPO)}, v18, 5, {v(vPO)}
    s_lshl_b32 {s(sT)}, {s(sT)}, 6
    v_add_u32 {v(vPO)}, {s(sT)}, {v(vPO)}
    v_add_u32 {v(vPO+1)}, 0x4000, {v(vPO)}
    v_xor_b32 v18, v18, {v(vLane)}
    v_and_b32 v18, 15, v18
    v_lshlrev_b32 v18, 4, v18
    v_lshl_add_u32 {v(vBA)}, v19, 8, v18
    v_add_u32 {v(vBA)}, {K1_X}, {v(vBA)}
    """)
    for st in range(1, 8):
        e(f"v_xor_b32 {v(vBA+st)}, {st<<5}, {v(vBA)}")
    e(f"""
    s_mov_b32 {s(sL2E)}, {f32(-LOG2E)}
    s_mov_b32 {s(sL2E+1)}, {f32(-LOG2E)}
    s_waitcnt vmcnt(0) lgkmcnt(0)
    s_barrier
    """)
    vSt, vCn = 20, 18
    vAf, vBf, vAc = 32, 64, 96
    e(f"""
    ds_read_b32 {v(vCn)}, {v(vCA)} offset:{K1_CNT}
    ds_read_b32 {v(vCn+1)}, {v(vCA)} offset:{K1_CNT+256}
    ds_read_b128 {v(vSt,4)}, {v(vSA)} offset:{K1_ST}
    ds_read_b128 {v(vSt+4,4)}, {v(vSA)} offset:{K1_ST+64*272}
    """)
    for st in range(4):
        e(f"ds_read_b64_tr_b16 {v(vAf+4*st,2)}, {v(vTA)} offset:{st*8192}")
        e(f"ds_read_b64_tr_b16 {v(vAf+4*st+2,2)}, {v(vTA)} offset:{st*8192+2048}")
        e(f"ds_read_b128 {v(vBf+4*st,4)}, {v(vBA+st)}")
    e("s_waitcnt lgkmcnt(12)")
    for i in range(2):
        e(f"""
        v_cndmask_b32 {v(vSt+4*i)}, {v(vSt+4*i)}, {v(vCn+i)}, {s(sQ0,2)}
        v_cmp_le_u32 vcc, {v(vQ16)}, {v(vCn+i)}
        s_mov_b64 exec, vcc
        global_store_dwordx4 {v(vG0+i)}, {v(vSt+4*i,4)}, {s(sRB,2)}
        s_mov_b64 exec, -1
        """)
    for st in range(8):
        if st < 4:
            e(f"s_waitcnt lgkmcnt(9)")
            e(f"v_mfma_f32_32x32x16_bf16 {v(vAc,16)}, {v(vAf+4*st,4)}, {v(vBf+4*st,4)}, " + ("0" if st == 0 else v(vAc,16)))
            s4 = st + 4
            e(f"ds_read_b64_tr_b16 {v(vAf+4*s4,2)}, {v(vTA)} offset:{s4*8192}")
            e(f"ds_read_b64_tr_b16 {v(vAf+4*s4+2,2)}, {v(vTA)} offset:{s4*8192+2048}")
            e(f"ds_read_b128 {v(vBf+4*s4,4)}, {v(vBA+s4)}")
        else:
            e(f"s_waitcnt lgkmcnt({3*(7-st) + (st-4)})")
            e(f"v_mfma_f32_32x32x16_bf16 {v(vAc,16)}, {v(vAf+4*st,4)}, {v(vBf+4*st,4)}, {v(vAc,16)}")
            e(f"ds_read_b128 {v(vBf+4*(st-4),4)}, {v(vBA+st-4)} offset:8192")
    for st in range(4, 8):
        e(f"ds_read_b128 {v(vBf+4*st,4)}, {v(vBA+st)} offset:8192")
    def store_tile(t):
        a = vAc + 16*t
        for r in range(0, 16, 2):
            e(f"v_pk_mul_f32 {v(a+r,2)}, {s(sL2E,2)}, {v(a+r,2)}")
        for r in range(0, 16, 2):
            e(f"v_cvt_pk_bf16_f32 {v(a+r//2)}, {v(a+r)}, {v(a+r+1)}")
        e(f"buffer_store_dwordx4 {v(a,4)}, {v(vPO+t)}, {s(sP,4)}, 0 offen")
        e(f"buffer_store_dwordx4 {v(a+4,4)}, {v(vPO+t)}, {s(sP,4)}, 0 offen offset:16")
    for st in range(8):
        e(f"s_waitcnt lgkmcnt({7-st})")
        e(f"v_mfma_f32_32x32x16_bf16 {v(vAc+16,16)}, {v(vAf+4*st,4)}, {v(vBf+4*st,4)}, " + ("0" if st == 0 else v(vAc+16,16)))
    store_tile(0)
    store_tile(1)
    c("overflow count of this workgroup")
    e(f"""
    s_cmp_lg_u32 {s(sW)}, 0
    s_cbranch_scc1 k1_end
    v_mov_b32 v18, {K1_OC}
    ds_read_b32 v19, v18
    s_lshl_b32 {s(sT)}, s2, 2
    s_add_u32 {s(sT)}, {s(sT)}, {WS_OVFC}
    v_mov_b32 v18, {s(sT)}
    s_mov_b64 exec, 1
    s_waitcnt lgkmcnt(0)
    global_store_dword v18, v19, s[32:33]
    k1_end:
    s_endpgm
    """)

L_ND, L_HIST, L_DEG, L_OWN, L_OVM = 0, 1024, 1280, 1792, 2304
L_C2 = 3072
L_X = 7168
L_HS = 3072
L_Q = 55296
QS, HSS = 1040, 528
K2_LDS = L_Q + NPB*QS

def dpp_scan(r):
    for sh in (1, 2, 4, 8):
        e("s_nop 1")
        e(f"v_add_u32_dpp {v(r)}, {v(r)}, {v(r)} row_shr:{sh} row_mask:0xf bank_mask:0xf bound_ctrl:0")
    e("s_nop 1")
    e(f"v_add_u32_dpp {v(r)}, {v(r)}, {v(r)} row_bcast:15 row_mask:0xa bank_mask:0xf")
    e("s_nop 1")
    e(f"v_add_u32_dpp {v(r)}, {v(r)}, {v(r)} row_bcast:31 row_mask:0xc bank_mask:0xf")

def gen_k2():
    e("k2_kernel:")
    sW, sNN, sT, sT2, sN8, sOff, sCnt = 3, 4, 5, 6, 7, 8, 9
    sX = 36; sL = 40; sPS = 44
    R = [48, 64, 80]
    sM = 48
    sSel = 56; sFB = 58
    sNode = 10
    nodeS = [10, 11, 12, 13, 14, 15, 96]
    sSc = 98
    vLane = 1
    vRec = 4
    vHd = 12
    vRk = 14
    vAd = 18
    vWB = 22
    vBA = 26
    vT = 34
    vQW = 40
    vAf, vBf, vAc = 48, 80, 96
    e(f"""
    s_cmp_ge_u32 s2, 256
    s_cbranch_scc1 k2_end
    s_load_dwordx16 s[16:31], s[0:1], 0
    s_load_dwordx2 s[32:33], s[0:1], 80
    s_load_dwordx2 s[34:35], s[0:1], 64
    v_lshrrev_b32 v2, 6, v0
    v_and_b32 {v(vLane)}, 63, v0
    v_readfirstlane_b32 {s(sW)}, v2
    s_cmp_eq_u32 s2, 255
    s_cselect_b32 {s(sNN)}, {N-255*NPB}, {NPB}
    v_lshlrev_b32 v3, 4, {v(vLane)}
    v_lshl_add_u32 v2, v2, 11, v3
    v_and_b32 {v(vT)}, 0xff00, v2
    s_mov_b32 {s(sL+2)}, {RS}
    s_mov_b32 {s(sL+3)}, 0x20000
    s_lshl_b32 {s(sX+2)}, {s(sNN)}, 8
    s_mov_b32 {s(sX+3)}, 0x20000
    s_mul_i32 {s(sT)}, s2, {RS}
    s_add_u32 {s(sT)}, {s(sT)}, {WS_REC}
    """)
    x_tile_dma(sX, sW, vLane, vT+1, vT+2, L_X, sT2)
    c("LDS init: C2 zero (4 KiB), ND = (127, 0), HIST/DEG/OWN/OVM zero")
    e(f"""
    v_lshlrev_b32 {v(vT+3)}, 2, v0
    v_mov_b32 {v(vT+4)}, 0
    ds_write_b32 {v(vT+3)}, {v(vT+4)} offset:{L_C2}
    v_and_b32 {v(vT+5)}, 0x301, v0
    v_cmp_eq_u32 vcc, 0, {v(vT+5)}
    s_cmp_ge_u32 {s(sW)}, 12
    s_cbranch_scc1 k2_noinit
    v_cndmask_b32 {v(vT+4)}, 0, 63, vcc
    v_cndmask_b32 {v(vT+5)}, 0, 64, vcc
    v_add_u32 {v(vT+4)}, {v(vT+4)}, {v(vT+5)}
    ds_write_b32 {v(vT+3)}, {v(vT+4)}
    k2_noinit:
    s_waitcnt lgkmcnt(0)
    s_add_u32 {s(sL)}, s32, {s(sT)}
    s_addc_u32 {s(sL+1)}, s33, 0
    s_mul_i32 {s(sT)}, s2, {NPB*256}
    buffer_load_dwordx4 {v(vRec,4)}, v2, {s(sL,4)}, 0 offen
    buffer_load_dwordx4 {v(vRec+4,4)}, v2, {s(sL,4)}, 0 offen offset:1024
    buffer_load_dword {v(vHd)}, {v(vT)}, {s(sL,4)}, 0 offen
    buffer_load_dword {v(vHd+1)}, {v(vT)}, {s(sL,4)}, 0 offen offset:1024
    s_add_u32 {s(sX)}, s16, {s(sT)}
    s_addc_u32 {s(sX+1)}, s17, 0
    s_lshl_b32 {s(sT2)}, {s(sW)}, 11
    s_add_u32 m0, {s(sT2)}, {L_X}
    s_and_b32 {s(sT)}, {s(sW)}, 7
    buffer_load_dwordx4 {v(vT+1)}, {s(sX,4)}, {s(sT2)} offen lds
    buffer_load_dwordx4 {v(vT+2)}, {s(sX,4)}, {s(sT2)} offen offset:1024 lds
    s_lshl_b32 {s(sT2)}, {s(sT)}, 13
    s_add_u32 {s(sT2)}, {s(sT2)}, {WS_FRAG + 4096}
    s_add_u32 {s(sFB)}, s32, {s(sT2)}
    s_addc_u32 {s(sFB+1)}, s33, 0
    """)
    for st in range(8):
        e(f"global_load_dwordx4 {v(vAf+4*st,4)}, v3, {s(sFB,2)} offset:{(st-4)*1024}")
    e(f"""
    v_lshlrev_b32 v2, 3, {v(vLane)}
    v_add_u32 {v(vT)}, {256*512}, v2
    global_load_dwordx2 {v(vWB,2)}, {v(vT)}, s[24:25]
    global_load_dwordx2 {v(vWB+2,2)}, v2, s[26:27]
    s_barrier
    """)
    c("B-fragment addresses, Q write addresses")
    e(f"""
    v_and_b32 {v(vT)}, 31, {v(vLane)}
    s_lshr_b32 {s(sT2)}, {s(sW)}, 3
    s_lshl_b32 {s(sT2)}, {s(sT2)}, 6
    v_add_u32 {v(vT)}, {s(sT2)}, {v(vT)}
    v_lshrrev_b32 {v(vT+1)}, 5, {v(vLane)}
    v_mul_u32_u24 {v(vQW)}, {QS}, {v(vT)}
    v_lshl_add_u32 {v(vQW)}, {v(vT+1)}, 6, {v(vQW)}
    s_lshl_b32 {s(sT)}, {s(sT)}, 7
    s_add_u32 {s(sT)}, {s(sT)}, {L_Q}
    v_add_u32 {v(vQW)}, {s(sT)}, {v(vQW)}
    v_add_u32 {v(vQW+1)}, 32, {v(vT)}
    v_xor_b32 {v(vT+1)}, {v(vT+1)}, {v(vLane)}
    v_and_b32 {v(vT+1)}, 15, {v(vT+1)}
    v_lshlrev_b32 {v(vT+1)}, 4, {v(vT+1)}
    v_lshl_add_u32 {v(vBA)}, {v(vT)}, 8, {v(vT+1)}
    """)
    for st in range(1, 8):
        e(f"v_xor_b32 {v(vBA+st)}, {st<<5}, {v(vBA)}")
    c("slot numbers (x8) of this lane's two records per load; validity masks")
    e(f"""
    v_and_b32 {v(vT)}, 0xf0, v3
    v_add_u32 {v(vT+1)}, 8, {v(vT)}
    v_cmp_ne_u32 {s(sSel,2)}, 0, {v(vT)}
    v_mov_b32 {v(vT+2)}, 8
    s_waitcnt vmcnt(12)
    """)
    for i in range(4):
        e(f"v_cmp_le_u32 {s(sM+2*i,2)}, {v(vT+(i&1))}, {v(vHd+(i>>1))}")
        e(f"v_and_b32 {v(vAd+i)}, 0xffff, {v(vRec+2*i+1)}")
    e(f"""
    s_and_b64 {s(sM,2)}, {s(sM,2)}, {s(sSel,2)}
    s_and_b64 {s(sM+4,2)}, {s(sM+4,2)}, {s(sSel,2)}
    """)
    for i in range(4):
        e(f"s_mov_b64 exec, {s(sM+2*i,2)}")
        e(f"ds_add_rtn_u32 {v(vRk+i)}, {v(vAd+i)}, {v(vT+2)} offset:{L_C2}")
    e(f"""
    s_mov_b64 exec, -1
    v_max_u32 {v(vT+3)}, {v(vHd)}, {v(vHd+1)}
    v_cmp_lt_u32 vcc, 248, {v(vT+3)}
    s_cbranch_vccz k2_noovf
    """)
    c("rare: remember which chunks overflowed (bit c of OVM)")
    for i in range(2):
        e(f"""
        v_lshrrev_b32 {v(vT+3)}, 4, {v(vLane)}
        s_lshl_b32 {s(sT)}, {s(sW)}, 3
        s_add_u32 {s(sT)}, {s(sT)}, {4*i}
        v_add_u32 {v(vT+3)}, {s(sT)}, {v(vT+3)}
        v_lshlrev_b32 {v(vT+4)}, {v(vT+3)}, 1
        v_lshrrev_b32 {v(vT+3)}, 5, {v(vT+3)}
        v_lshlrev_b32 {v(vT+3)}, 2, {v(vT+3)}
        v_cmp_lt_u32 vcc, 248, {v(vHd+i)}
        s_mov_b64 exec, vcc
        ds_or_b32 {v(vT+3)}, {v(vT+4)} offset:{L_OVM}
        s_mov_b64 exec, -1
        """)
    e(f"""
    k2_noovf:
    s_waitcnt vmcnt(10) lgkmcnt(0)
    s_barrier
    s_cmp_lg_u32 {s(sW)}, 0
    s_cbranch_scc1 k2_noassign
    """)
    c("wave 0: rank the nodes by degree, deal them to (wave, slot) in snake order")
    a = vBf
    e(f"""
    v_lshlrev_b32 {v(vT)}, 5, {v(vLane)}
    ds_read_b128 {v(a,4)}, {v(vT)} offset:{L_C2}
    ds_read_b128 {v(a+4,4)}, {v(vT)} offset:{L_C2+16}
    ds_read_b128 {v(a+8,4)}, {v(vT)} offset:{L_C2+2048}
    ds_read_b128 {v(a+12,4)}, {v(vT)} offset:{L_C2+2064}
    v_add_u32 {v(vT+1)}, 64, {v(vLane)}
    v_cmp_gt_u32 s[60:61], {s(sNN)}, {v(vLane)}
    v_cmp_gt_u32 s[62:63], {s(sNN)}, {v(vT+1)}
    v_mov_b32 {v(vT+2)}, 1
    v_lshlrev_b32 {v(vT+3)}, 2, {v(vLane)}
    s_waitcnt lgkmcnt(0)
    """)
    d = vAc
    for i in range(2):
        b = a + 8*i
        e(f"""
        v_add3_u32 {v(b)}, {v(b)}, {v(b+1)}, {v(b+2)}
        v_add3_u32 {v(b+3)}, {v(b+3)}, {v(b+4)}, {v(b+5)}
        v_add3_u32 {v(b)}, {v(b)}, {v(b+6)}, {v(b+7)}
        v_add_u32 {v(d+2*i+1)}, {v(b)}, {v(b+3)}
        v_lshrrev_b32 {v(d+4+i)}, 1, {v(d+2*i+1)}
        v_min_u32 {v(d+4+i)}, 252, {v(d+4+i)}
        v_sub_u32 {v(d+4+i)}, 252, {v(d+4+i)}
        s_mov_b64 exec, s[{60+2*i}:{61+2*i}]
        ds_add_rtn_u32 {v(d+6+i)}, {v(d+4+i)}, {v(vT+2)} offset:{L_HIST}
        s_mov_b64 exec, -1
        """)
    e(f"""
    ds_read_b32 {v(d+8)}, {v(vT+3)} offset:{L_HIST}
    v_mov_b32 {v(d)}, {v(vLane)}
    v_mov_b32 {v(d+2)}, {v(vT+1)}
    v_lshrrev_b32 {v(a)}, 3, {v(d+1)}
    v_lshrrev_b32 {v(a+1)}, 3, {v(d+3)}
    ds_write_b32 {v(vT+3)}, {v(a)} offset:{L_DEG}
    ds_write_b32 {v(vT+3)}, {v(a+1)} offset:{L_DEG+256}
    s_waitcnt lgkmcnt(2)
    v_mov_b32 {v(d+9)}, {v(d+8)}
    """)
    dpp_scan(d+8)
    e(f"""
    v_sub_u32 {v(d+8)}, {v(d+8)}, {v(d+9)}
    ds_bpermute_b32 {v(a+2)}, {v(d+4)}, {v(d+8)}
    ds_bpermute_b32 {v(a+3)}, {v(d+5)}, {v(d+8)}
    s_waitcnt lgkmcnt(0)
    """)
    for i in range(2):
        e(f"""
        v_add_u32 {v(a+2+i)}, {v(a+2+i)}, {v(d+6+i)}
        v_bfe_i32 {v(a+4+i)}, {v(a+2+i)}, 4, 1
        v_xor_b32 {v(a+4+i)}, {v(a+4+i)}, {v(a+2+i)}
        v_and_b32 {v(a+4+i)}, 15, {v(a+4+i)}
        v_lshrrev_b32 {v(a+2+i)}, 4, {v(a+2+i)}
        v_lshl_add_u32 {v(a+2+i)}, {v(a+4+i)}, 3, {v(a+2+i)}
        v_lshlrev_b32 {v(a+4+i)}, 3, {v(a+2+i)}
        s_mov_b64 exec, s[{60+2*i}:{61+2*i}]
        ds_write_b64 {v(a+4+i)}, {v(d+2*i,2)} offset:{L_ND}
        ds_write_b32 {v(vT+3)}, {v(a+2+i)} offset:{L_OWN+256*i}
        s_mov_b64 exec, -1
        """)
    e(f"""
    s_waitcnt lgkmcnt(0)
    s_branch k2_b3
    k2_noassign:
    """)
    def q_tile(t, first_wait):
        acc = vAc + 16*t
        for st in range(4):
            e(f"ds_read_b128 {v(vBf+4*st,4)}, {v(vBA+st)} offset:{L_X+8192*t}")
        if first_wait: e(first_wait)
        for st in range(8):
            e(f"s_waitcnt lgkmcnt({min(3, 7-st)})")
            e(f"v_mfma_f32_32x32x16_bf16 {v(acc,16)}, {v(vAf+4*st,4)}, {v(vBf+4*(st&3),4)}, " + ("0" if st == 0 else v(acc,16)))
            if st < 4:
                e(f"ds_read_b128 {v(vBf+4*st,4)}, {v(vBA+st+4)} offset:{L_X+8192*t}")
    q_tile(0, "s_waitcnt vmcnt(2)")
    e(f"""
    k2_b3:
    s_barrier
    """)
    c("per wave: list offsets per (phase, slot); base = padded sum of the lower waves' degrees")
    e(f"""
    v_and_b32 {v(vT)}, 7, {v(vLane)}
    s_lshl_b32 {s(sT)}, {s(sW)}, 6
    v_lshl_add_u32 {v(vT+1)}, {v(vT)}, 3, {s(sT)}
    ds_read_b32 {v(vT+1)}, {v(vT+1)} offset:{L_ND}
    ds_read_b128 {v(vBf,4)}, v3 offset:{L_ND}
    v_lshrrev_b32 {v(vT+2)}, 3, {v(vLane)}
    v_lshlrev_b32 {v(vT+2)}, 2, {v(vT+2)}
    v_lshlrev_b32 {v(vT)}, 18, {v(vT)}
    s_lshl_b32 {s(sT2)}, {s(sW)}, 2
    s_sub_u32 {s(sT2)}, {s(sT2)}, 1
    s_and_b32 {s(sT2)}, {s(sT2)}, 63
    s_waitcnt lgkmcnt(1)
    v_lshl_add_u32 {v(vT+2)}, {v(vT+1)}, 5, {v(vT+2)}
    ds_read_b32 {v(vT+3)}, {v(vT+2)} offset:{L_C2}
    v_cmp_ne_u32 vcc, 127, {v(vT+1)}
    """)
    for i in range(7):
        e(f"v_readlane_b32 {s(nodeS[i])}, {v(vT+1)}, {i}")
    e(f"""
    s_waitcnt lgkmcnt(0)
    v_add_u32 {v(vT+4)}, {v(vBf+1)}, {v(vBf+3)}
    v_lshl_or_b32 {v(vT+4)}, {v(vT+4)}, 16, {v(vT+3)}
    """)
    dpp_scan(vT+4)
    e(f"""
    s_nop 0
    v_readlane_b32 {s(sOff)}, {v(vT+4)}, {s(sT2)}
    v_readlane_b32 {s(sN8)}, {v(vT+4)}, 63
    v_sub_u32 {v(vT+4)}, {v(vT+4)}, {v(vT+3)}
    v_and_b32 {v(vT+4)}, 0xffff, {v(vT+4)}
    s_lshr_b32 {s(sOff)}, {s(sOff)}, 16
    s_cmp_eq_u32 {s(sW)}, 0
    s_cselect_b32 {s(sOff)}, 0, {s(sOff)}
    s_lshl_b32 {s(sT)}, {s(sW)}, 8
    s_add_u32 {s(sOff)}, {s(sOff)}, {s(sT)}
    s_add_u32 {s(sOff)}, {s(sOff)}, 63
    s_andn2_b32 {s(sOff)}, {s(sOff)}, 63
    s_and_b32 {s(sN8)}, {s(sN8)}, 0xffff
    v_add3_u32 {v(vT+4)}, {v(vT+4)}, {s(sOff)}, {v(vT)}
    s_mov_b64 exec, vcc
    ds_write_b32 {v(vT+2)}, {v(vT+4)} offset:{L_C2}
    s_mov_b64 exec, -1
    s_mov_b32 {s(sSel)}, 0x07060302
    s_add_u32 {s(sT)}, {s(sOff)}, {s(sN8)}
    v_lshl_add_u32 {v(vT)}, {v(vLane)}, 3, {s(sT)}
    v_mov_b32 {v(vT+2)}, 0x7fffff00
    v_mov_b32 {v(vT+3)}, 28
    s_waitcnt vmcnt(2) lgkmcnt(0)
    s_barrier
    """)
    c("scatter the records into the per-wave lists (in place of the record region)")
    for i in range(4):
        e(f"s_mov_b64 exec, {s(sM+2*i,2)}")
        e(f"ds_read_b32 {v(vAd+i)}, {v(vAd+i)} offset:{L_C2}")
    e(f"""
    s_mov_b64 exec, 0xffff
    buffer_store_dwordx2 {v(vT+2,2)}, {v(vT)}, {s(sL,4)}, 0 offen
    s_waitcnt lgkmcnt(0)
    """)
    for i in range(4):
        e(f"""
        s_mov_b64 exec, {s(sM+2*i,2)}
        v_add_u32_sdwa {v(vRk+i)}, {v(vAd+i)}, {v(vRk+i)} dst_sel:DWORD dst_unused:UNUSED_PAD src0_sel:WORD_0 src1_sel:DWORD
        v_perm_b32 {v(vRec+2*i+1)}, {v(vRec+2*i+1)}, {v(vAd+i)}, {s(sSel)}
        buffer_store_dwordx2 {v(vRec+2*i,2)}, {v(vRk+i)}, {s(sL,4)}, 0 offen
        """)
    e(f"""
    s_mov_b64 exec, -1
    s_cmp_lg_u32 {s(sW)}, 0
    s_cbranch_scc1 k2_q1
    """)
    q_tile(0, None)
    e("k2_q1:")
    q_tile(1, None)
    for r in range(4):
        e(f"ds_write_b128 {v(vQW)}, {v(vAc+4*r,4)} offset:{16*r}")
    e(f"""
    v_cmp_gt_u32 vcc, {NPB}, {v(vQW+1)}
    s_mov_b32 {s(sPS)}, s32
    s_mov_b32 {s(sPS+1)}, s33
    s_mov_b32 {s(sPS+2)}, {N*512}
    s_mov_b32 {s(sPS+3)}, 0x20000
    s_mov_b32 {s(sSc)}, {f32(-LOG2E)}
    s_mov_b32 {s(sSc+1)}, {f32(-LOG2E)}
    s_nop 1
    s_mov_b64 exec, vcc
    """)
    for r in range(4):
        e(f"ds_write_b128 {v(vQW)}, {v(vAc+16+4*r,4)} offset:{32*QS+16*r}")
    e(f"""
    s_mov_b64 exec, -1
    s_waitcnt vmcnt(0) lgkmcnt(0)
    s_barrier
    """)
    vL8 = 2
    vI, vOne, vWc, vB1 = 4, 6, 8, 12
    vU, vTt = 16, 24
    vP = 32
    vQ, vAcc = 48, 80
    e(f"""
    s_buffer_load_dwordx16 {s(R[0],16)}, {s(sL,4)}, {s(sOff)}
    s_buffer_load_dwordx16 {s(R[1],16)}, {s(sL,4)}, {s(sOff)} offset:64
    """)
    for i in range(7):
        e(f"""
        s_min_u32 {s(sT)}, {s(nodeS[i])}, {NPB-1}
        s_mul_i32 {s(sT)}, {s(sT)}, {QS}
        v_add_u32 {v(vP+i)}, {s(sT)}, v3
        ds_read_b128 {v(vQ+4*i,4)}, {v(vP+i)} offset:{L_Q}
        """)
    e(f"""
    v_lshlrev_b32 {v(vWc)}, 16, {v(vWB)}
    v_and_b32 {v(vWc+1)}, 0xffff0000, {v(vWB)}
    v_lshlrev_b32 {v(vWc+2)}, 16, {v(vWB+1)}
    v_and_b32 {v(vWc+3)}, 0xffff0000, {v(vWB+1)}
    v_lshlrev_b32 {v(vB1)}, 16, {v(vWB+2)}
    v_and_b32 {v(vB1+1)}, 0xffff0000, {v(vWB+2)}
    v_lshlrev_b32 {v(vB1+2)}, 16, {v(vWB+3)}
    v_and_b32 {v(vB1+3)}, 0xffff0000, {v(vWB+3)}
    v_pk_mul_f32 {v(vWc,2)}, {s(sSc,2)}, {v(vWc,2)}
    v_pk_mul_f32 {v(vWc+2,2)}, {s(sSc,2)}, {v(vWc+2,2)}
    v_pk_mul_f32 {v(vB1,2)}, {s(sSc,2)}, {v(vB1,2)}
    v_pk_mul_f32 {v(vB1+2,2)}, {s(sSc,2)}, {v(vB1+2,2)}
    s_add_u32 {s(sOff)}, {s(sOff)}, 128
    s_add_u32 {s(sCnt)}, {s(sN8)}, 8
    s_lshr_b32 {s(sCnt)}, {s(sCnt)}, 4
    s_waitcnt lgkmcnt(0)
    """)
    for i in range(8):
        e(f"buffer_load_dwordx2 {v(vP+2*i,2)}, {v(vL8)}, {s(sPS,4)}, {s(R[0]+2*i)} offen")
    c("identity rows for the 4x4x4 MFMA: lane&3 selects the half-word that holds 1.0")
    e(f"""
    v_and_b32 {v(vU)}, 1, {v(vLane)}
    v_lshlrev_b32 {v(vU)}, 4, {v(vU)}
    v_mov_b32 {v(vOne)}, 0x3f80
    v_lshlrev_b32 {v(vU)}, {v(vU)}, {v(vOne)}
    v_and_b32 {v(vU+1)}, 2, {v(vLane)}
    v_cmp_eq_u32 vcc, 0, {v(vU+1)}
    v_mov_b32 {v(vOne)}, 0x3f803f80
    v_mov_b32 {v(vOne+1)}, 0x3f803f80
    v_cndmask_b32 {v(vI)}, 0, {v(vU)}, vcc
    v_cndmask_b32 {v(vI+1)}, {v(vU)}, 0, vcc
    """)
    for i in range(7):
        for h in range(2):
            e(f"v_pk_fma_f32 {v(vQ+4*i+2*h,2)}, {v(vQ+4*i+2*h,2)}, {s(sSc,2)}, {v(vB1+2*h,2)}")
    for i in range(0, 28):
        e(f"v_mov_b32 {v(vAcc+i)}, 0")
    for i in range(4):
        e(f"v_mov_b32 {v(vQ+28+i)}, 0")
        e(f"v_mov_b32 {v(vAcc+28+i)}, 0")
    def cpair(ra, rb):
        e(f"s_set_gpr_idx_on {s(ra+1)}, gpr_idx(SRC2)")
        for h in range(2):
            e(f"v_pk_fma_f32 {v(vU+2*h,2)}, {s(ra,2)}, {v(vWc+2*h,2)}, {v(vQ+2*h,2)} op_sel:[1,0,0]")
        e(f"s_set_gpr_idx_idx {s(rb+1)}")
        for h in range(2):
            e(f"v_pk_fma_f32 {v(vU+4+2*h,2)}, {s(rb,2)}, {v(vWc+2*h,2)}, {v(vQ+2*h,2)} op_sel:[1,0,0]")
        e("s_set_gpr_idx_off")
    e(f"""
    s_cmp_eq_u32 {s(sCnt)}, 0
    s_cbranch_scc1 k2_loopdone
    """)
    cpair(R[0], R[0]+2)
    e("k2_loop:")
    for blk in range(3):
        C, L, F = R[blk], R[(blk+1) % 3], R[(blk+2) % 3]
        e(f"""
        s_waitcnt lgkmcnt(0)
        s_buffer_load_dwordx16 {s(F,16)}, {s(sL,4)}, {s(sOff)}
        s_add_u32 {s(sOff)}, {s(sOff)}, 64
        """)
        for p in range(4):
            pa, pb = vP + 4*p, vP + 4*p + 2
            ra, rb = C + 4*p, C + 4*p + 2
            na, nb = (C + 4*p + 4, C + 4*p + 6) if p < 3 else (L, L + 2)
            e(f"""
            s_waitcnt vmcnt(6)
            v_mfma_f32_4x4x4_16b_bf16 {v(vU,4)}, {v(vI,2)}, {v(pa,2)}, {v(vU,4)}
            v_mfma_f32_4x4x4_16b_bf16 {v(vU+4,4)}, {v(vI,2)}, {v(pb,2)}, {v(vU+4,4)}
            buffer_load_dwordx2 {v(pa,2)}, {v(vL8)}, {s(sPS,4)}, {s(L+4*p)} offen
            buffer_load_dwordx2 {v(pb,2)}, {v(vL8)}, {s(sPS,4)}, {s(L+4*p+2)} offen
            s_nop 1
            """)
            for r in range(8):
                e(f"v_exp_f32 {v(vTt+r)}, {v(vU+r)}")
            e(f"""
            v_mfma_f32_4x4x4_16b_bf16 {v(vTt,4)}, {v(vI,2)}, {v(vOne,2)}, {v(vTt,4)}
            s_sub_u32 {s(sCnt)}, {s(sCnt)}, 1
            v_mfma_f32_4x4x4_16b_bf16 {v(vTt+4,4)}, {v(vI,2)}, {v(vOne,2)}, {v(vTt+4,4)}
            s_cmp_eq_u32 {s(sCnt)}, 0
            s_nop 1
            """)
            for r in range(8):
                e(f"v_rcp_f32 {v(vTt+r)}, {v(vTt+r)}")
            e(f"s_set_gpr_idx_on {s(ra+1)}, gpr_idx(SRC2,DST)")
            for h in range(2):
                e(f"v_pk_fma_f32 {v(vAcc+2*h,2)}, {v(vU+2*h,2)}, {v(vTt+2*h,2)}, {v(vAcc+2*h,2)}")
            e(f"s_set_gpr_idx_idx {s(rb+1)}")
            for h in range(2):
                e(f"v_pk_fma_f32 {v(vAcc+2*h,2)}, {v(vU+4+2*h,2)}, {v(vTt+4+2*h,2)}, {v(vAcc+2*h,2)}")
            e("s_cbranch_scc1 k2_loopexit")
            cpair(na, nb)
    e(f"""
    s_branch k2_loop
    k2_loopexit:
    s_set_gpr_idx_off
    k2_loopdone:
    """)
    c("rare: edges that did not fit their segment; scan the overflow lists of the flagged chunks")
    e(f"""
    v_mov_b32 {v(vU)}, 0
    ds_read_b128 {v(vTt,4)}, {v(vU)} offset:{L_OVM}
    s_waitcnt vmcnt(0) lgkmcnt(0)
    v_or_b32 {v(vU+1)}, {v(vTt)}, {v(vTt+1)}
    v_or3_b32 {v(vU+1)}, {v(vU+1)}, {v(vTt+2)}, {v(vTt+3)}
    v_cmp_ne_u32 vcc, 0, {v(vU+1)}
    s_cbranch_vccz k2_epi
    v_readfirstlane_b32 s48, {v(vTt)}
    v_readfirstlane_b32 s49, {v(vTt+1)}
    v_readfirstlane_b32 s50, {v(vTt+2)}
    v_readfirstlane_b32 s51, {v(vTt+3)}
    s_add_u32 s52, s32, {WS_OVF}
    s_addc_u32 s53, s33, 0
    s_mov_b32 s54, {WS_OVFC + 1024 - WS_OVF}
    s_mov_b32 s55, 0x20000
    s_mov_b32 s56, 0
    k2_ov_chunk:
    s_and_b32 s57, s48, 1
    s_lshr_b64 s[48:49], s[48:49], 1
    s_lshl_b32 s58, s50, 31
    s_or_b32 s49, s49, s58
    s_lshr_b64 s[50:51], s[50:51], 1
    s_cmp_eq_u32 s57, 0
    s_cbranch_scc1 k2_ov_next
    s_lshl_b32 s57, s56, 1
    s_lshr_b32 s58, s2, 7
    s_add_u32 s57, s57, s58
    s_lshl_b32 s58, s57, 2
    s_add_u32 s58, s58, {WS_OVFC - WS_OVF}
    s_buffer_load_dword s59, s[52:55], s58
    s_lshl_b32 s57, s57, 15
    s_waitcnt lgkmcnt(0)
    s_min_u32 s59, s59, {CH*8}
    s_add_u32 s59, s59, s57
    k2_ov_rec:
    s_cmp_ge_u32 s57, s59
    s_cbranch_scc1 k2_ov_next
    s_buffer_load_dwordx2 s[60:61], s[52:55], s57
    s_add_u32 s57, s57, 8
    s_waitcnt lgkmcnt(0)
    s_and_b32 s58, s60, 0xff
    s_cmp_lg_u32 s58, s2
    s_cbranch_scc1 k2_ov_rec
    s_bfe_u32 s58, s61, 0x70005
    s_lshl_b32 s58, s58, 2
    v_mov_b32 {v(vTt)}, s58
    ds_read_b32 {v(vTt+1)}, {v(vTt)} offset:{L_OWN}
    s_waitcnt lgkmcnt(0)
    v_readfirstlane_b32 s62, {v(vTt+1)}
    s_lshr_b32 s63, s62, 3
    s_cmp_lg_u32 s63, {s(sW)}
    s_cbranch_scc1 k2_ov_rec
    s_and_b32 s60, s60, 0xfffffe00
    buffer_load_dwordx2 {v(vP,2)}, {v(vL8)}, {s(sPS,4)}, s60 offen
    v_mov_b32 {v(vTt+1)}, 1
    s_mov_b64 exec, 1
    ds_add_u32 {v(vTt)}, {v(vTt+1)} offset:{L_DEG}
    s_mov_b64 exec, -1
    s_and_b32 s62, s62, 7
    s_lshl_b32 s62, s62, 2
    s_and_b32 s61, s61, 0xffff0000
    s_or_b32 s61, s61, s62
    s_set_gpr_idx_on s61, gpr_idx(SRC2)
    v_pk_fma_f32 {v(vU,2)}, s[60:61], {v(vWc,2)}, {v(vQ,2)} op_sel:[1,0,0]
    v_pk_fma_f32 {v(vU+2,2)}, s[60:61], {v(vWc+2,2)}, {v(vQ+2,2)} op_sel:[1,0,0]
    s_set_gpr_idx_off
    s_waitcnt vmcnt(0) lgkmcnt(0)
    s_nop 1
    v_mfma_f32_4x4x4_16b_bf16 {v(vU,4)}, {v(vI,2)}, {v(vP,2)}, {v(vU,4)}
    s_nop 7
    """)
    for r in range(4): e(f"v_exp_f32 {v(vTt+r)}, {v(vU+r)}")
    e("s_nop 1")
    for r in range(4): e(f"v_add_f32 {v(vTt+r)}, 1.0, {v(vTt+r)}")
    for r in range(4): e(f"v_rcp_f32 {v(vTt+r)}, {v(vTt+r)}")
    e(f"""
    s_set_gpr_idx_on s61, gpr_idx(SRC2,DST)
    v_pk_fma_f32 {v(vAcc,2)}, {v(vU,2)}, {v(vTt,2)}, {v(vAcc,2)}
    v_pk_fma_f32 {v(vAcc+2,2)}, {v(vU+2,2)}, {v(vTt+2,2)}, {v(vAcc+2,2)}
    s_set_gpr_idx_off
    s_branch k2_ov_rec
    k2_ov_next:
    s_add_u32 s56, s56, 1
    s_cmp_lt_u32 s56, 128
    s_cbranch_scc1 k2_ov_chunk
    k2_epi:
    """)
    vW2 = 16
    vO = 112
    vE0 = 4
    e(f"""
    s_and_b32 {s(sT)}, {s(sW)}, 3
    s_lshl_b32 {s(sT2)}, {s(sT)}, 14
    s_add_u32 {s(sT2)}, {s(sT2)}, {WS_FRAG + 65536 + 4096}
    s_add_u32 s48, s32, {s(sT2)}
    s_addc_u32 s49, s33, 0
    s_add_u32 s50, s48, 8192
    s_addc_u32 s51, s49, 0
    """)
    for st in range(16):
        e(f"global_load_dwordx4 {v(vW2+4*st,4)}, v3, s[{48+2*(st>>3)}:{49+2*(st>>3)}] offset:{((st&7)-4)*1024}")
    c("b2 row for the degree term: lanes < 32 hold b2[32*ot + pi(lane)]")
    e(f"""
    v_bfe_u32 {v(vE0)}, {v(vLane)}, 2, 1
    v_lshlrev_b32 {v(vE0)}, 5, {v(vE0)}
    v_bfe_u32 {v(vE0+1)}, {v(vLane)}, 3, 2
    v_lshl_add_u32 {v(vE0)}, {v(vE0+1)}, 3, {v(vE0)}
    v_and_b32 {v(vE0+1)}, 3, {v(vLane)}
    v_lshl_add_u32 {v(vE0)}, {v(vE0+1)}, 1, {v(vE0)}
    s_lshl_b32 {s(sT)}, {s(sT)}, 6
    v_add_u32 {v(vE0)}, {s(sT)}, {v(vE0)}
    v_mov_b32 {v(vE0+3)}, 0
    s_mov_b32 exec_hi, 0
    global_load_ushort {v(vE0+3)}, {v(vE0)}, s[30:31]
    s_mov_b64 exec, -1
    s_mov_b32 {s(sSc)}, {f32(-LN2)}
    s_mov_b32 {s(sSc+1)}, {f32(-LN2)}
    """)
    for i in range(7):
        a4 = vAcc + 4*i
        e(f"""
        s_cmp_eq_u32 {s(nodeS[i])}, 127
        s_cbranch_scc1 k2_hsdone
        v_pk_mul_f32 {v(a4,2)}, {s(sSc,2)}, {v(a4,2)}
        v_pk_mul_f32 {v(a4+2,2)}, {s(sSc,2)}, {v(a4+2,2)}
        s_mul_i32 {s(sT2)}, {s(nodeS[i])}, {HSS}
        v_cvt_pk_bf16_f32 {v(a4)}, {v(a4)}, {v(a4+1)}
        v_cvt_pk_bf16_f32 {v(a4+1)}, {v(a4+2)}, {v(a4+3)}
        v_add_u32 {v(a4+2)}, {s(sT2)}, {v(vL8)}
        ds_write_b64 {v(a4+2)}, {v(a4,2)} offset:{L_HS}
        """)
    e(f"""
    k2_hsdone:
    v_and_b32 {v(vE0+4)}, 31, {v(vLane)}
    s_lshr_b32 {s(sT2)}, {s(sW)}, 2
    s_lshl_b32 {s(sT2)}, {s(sT2)}, 5
    v_add_u32 {v(vE0+4)}, {s(sT2)}, {v(vE0+4)}
    v_lshrrev_b32 {v(vE0+5)}, 5, {v(vLane)}
    v_lshlrev_b32 {v(vE0+6)}, 8, {v(vE0+4)}
    v_lshl_add_u32 {v(vE0+6)}, {v(vE0+5)}, 5, {v(vE0+6)}
    v_add_u32 {v(vE0+6)}, {s(sT)}, {v(vE0+6)}
    v_lshlrev_b32 {v(vE0+7)}, 2, {v(vE0+4)}
    v_min_u32 {v(vE0+4)}, {NPB-1}, {v(vE0+4)}
    v_mul_u32_u24 {v(vE0+4)}, {HSS}, {v(vE0+4)}
    v_lshl_add_u32 {v(vE0+4)}, {v(vE0+5)}, 4, {v(vE0+4)}
    s_mul_i32 {s(sT)}, s2, {NPB*256}
    s_add_u32 {s(sX)}, s34, {s(sT)}
    s_addc_u32 {s(sX+1)}, s35, 0
    s_waitcnt lgkmcnt(0)
    s_barrier
    ds_read_b32 {v(vE0+7)}, {v(vE0+7)} offset:{L_DEG}
    """)
    vHB = 80
    for st in range(8):
        e(f"ds_read_b128 {v(vHB+4*st,4)}, {v(vE0+4)} offset:{L_HS+32*st}")
    e(f"""
    s_waitcnt vmcnt(0) lgkmcnt(8)
    v_lshl_or_b32 {v(vE0+2)}, {v(vE0+3)}, 16, {v(vE0+3)}
    v_cvt_f32_ubyte0 {v(vE0+8)}, {v(vE0+7)}
    v_and_b32 {v(vE0+9)}, 0xff00, {v(vE0+7)}
    v_and_b32 {v(vE0+10)}, 0xff0000, {v(vE0+7)}
    v_cvt_f32_u32 {v(vE0+9)}, {v(vE0+9)}
    v_cvt_f32_u32 {v(vE0+10)}, {v(vE0+10)}
    v_cvt_pk_bf16_f32 {v(vE0+8)}, {v(vE0+8)}, {v(vE0+9)}
    v_lshrrev_b32 {v(vE0+9)}, 16, {v(vE0+10)}
    s_nop 1
    v_mfma_f32_32x32x8_bf16 {v(vO,16)}, {v(vE0+2,2)}, {v(vE0+8,2)}, 0
    """)
    for st in range(16):
        e(f"s_waitcnt lgkmcnt({min(7, 15-st)})")
        e(f"v_mfma_f32_32x32x16_bf16 {v(vO,16)}, {v(vW2+4*st,4)}, {v(vHB+4*(st&7),4)}, {v(vO,16)}")
        if st < 8:
            e(f"ds_read_b128 {v(vHB+4*st,4)}, {v(vE0+4)} offset:{L_HS+32*(st+8)}")
    e("s_nop 15")
    for r in range(0, 16, 2):
        e(f"v_cvt_pk_bf16_f32 {v(vO+r//2)}, {v(vO+r)}, {v(vO+r+1)}")
    e(f"""
    buffer_store_dwordx4 {v(vO,4)}, {v(vE0+6)}, {s(sX,4)}, 0 offen
    buffer_store_dwordx4 {v(vO+4,4)}, {v(vE0+6)}, {s(sX,4)}, 0 offen offset:16
    k2_end:
    s_endpgm
    """)

def kd(name, vg, sg):
    return f""".amdhsa_kernel {name}
  .amdhsa_next_free_vgpr {vg}
  .amdhsa_next_free_sgpr {sg}
  .amdhsa_accum_offset {vg}
  .amdhsa_group_segment_fixed_size 0
  .amdhsa_kernarg_size 88
  .amdhsa_user_sgpr_count 2
  .amdhsa_user_sgpr_kernarg_segment_ptr 1
  .amdhsa_system_sgpr_workgroup_id_x 1
.end_amdhsa_kernel"""

hdr = f"""; Edge-featured MPNN: out = segment_sum(silu([x[src], x[dst], e] @ w1 + b1) @ w2 + b2, dst)
; @launch kernel=k1_kernel grid=(256,1,1) block=(1024,1,1) lds={K1_LDS}
; @launch kernel=k2_kernel grid=(256,1,1) block=(1024,1,1) lds={K2_LDS}
.amdgcn_target "amdgcn-amd-amdhsa--gfx950"
.text
"""
out.append(".globl k1_kernel\n.p2align 8\n.type k1_kernel,@function")
gen_k1()
out.append(".globl k2_kernel\n.p2align 8\n.type k2_kernel,@function")
gen_k2()
out.append('.section .rodata,"a"\n.p2align 6')
out.append(kd("k1_kernel", 128, 102))
out.append(".p2align 6")
out.append(kd("k2_kernel", 128, 102))
text = hdr + "\n".join(l for l in out if l.strip() != "") + "\n"
dst = [a for a in sys.argv[1:] if not a.startswith("--")]
open(dst[0] if dst else "standalone__edge_featured_mpnn_mpnn__graph.s", "w").write(text)
```

```python
import sys, struct

N, E = 25000, 400000
NPB = 98
CH = 3128
RS = 36864
WS_P    = 0
WS_REC  = 0x0D00000
WS_OVF  = 0x1800000
WS_OVFC = 0x2000000
WS_FRAG = 0x2010000
WS_CONST = WS_FRAG + 131072
LOG2E = 1.4426950408889634
LN2 = 0.6931471805599453
def f32(x): return "0x%08x" % struct.unpack("<I", struct.pack("<f", x))[0]

out = []
def e(s=""):
    for line in s.split("\n"):
        out.append("    " + line.strip() if line.strip() and not line.strip().endswith(":") else line.strip())
def c(s): out.append("    ; " + s)
def v(a, n=1): return f"v{a}" if n == 1 else f"v[{a}:{a+n-1}]"
def s(a, n=1): return f"s{a}" if n == 1 else f"s[{a}:{a+n-1}]"

K1_WG_OF_CHUNK = """
s_lshr_b32 s57, s56, 3
s_lshl_b32 s57, s57, 1
s_lshr_b32 s58, s2, 7
s_add_u32 s57, s57, s58
s_lshl_b32 s57, s57, 3
s_and_b32 s58, s56, 7
s_add_u32 s57, s57, s58
"""
def opt(name, dflt):
    for a in sys.argv[1:]:
        if a.startswith(f"--{name}="): return a.split("=")[1]
    return dflt
STAMP = "--stamp" in sys.argv
WS_STAMP = 0x3000000
def stamp1(i):
    if STAMP:
        e(f"s_memrealtime s[100:101]\ns_waitcnt lgkmcnt(0)\ns_mov_b32 s{66+i}, s100")
def stamp2(i):
    if STAMP:
        if i == 0: e(f"s_memrealtime s[100:101]\ns_waitcnt lgkmcnt(0)\ns_mov_b32 s97, s100")
        else: e(f"s_memrealtime s[100:101]\ns_waitcnt lgkmcnt(0)\nv_writelane_b32 v0, s100, {i}")
        if i in (10, 11): e(f"s_memtime s[100:101]\ns_waitcnt lgkmcnt(0)\nv_writelane_b32 v0, s100, {i+6}")
def stamp_out(k, n, sW):
    if STAMP:
        e("s_mov_b64 exec, -1")
        if k == 0:
            for i in range(n): e(f"v_writelane_b32 v0, s{66+i}, {i}")
        else:
            e("v_writelane_b32 v0, s97, 0")
        e(f"""
        s_lshl_b32 s100, s2, 4
        s_add_u32 s100, s100, s{sW}
        s_lshl_b32 s100, s100, 7
        s_add_u32 s100, s100, {WS_STAMP + k*0x80000}
        v_lshlrev_b32 v2, 2, v1
        v_add_u32 v2, s100, v2
        s_mov_b32 exec_hi, 0
        global_store_dword v2, v0, s[32:33]
        """)

K1_CNT, K1_OC, K1_ST, K1_X = 0, 512, 1024, 35840
K1_W = K1_X + 104*256
K1_LDS = K1_W + 65536
SC = opt("sc", "sc1")
SCR = opt("scr", "sc1")
GRAN = int(opt("gran", 0xc0))

class LQ:
    def __init__(self): self.q = []
    def rd(self, tag, txt): e(txt); self.q.append(tag)
    def need(self, tags):
        idx = [i for i, t in enumerate(self.q) if t in tags]
        if not idx: return
        n = len(self.q) - 1 - max(idx)
        assert n <= 15
        e(f"s_waitcnt lgkmcnt({n})")
        self.q = self.q[max(idx)+1:]

def gen_k1():
    e("k1_kernel:")
    sW, sC, sHB, sLim, sT, sT2, sWr = 3, 4, 5, 6, 7, 8, 9
    sEM = 10
    sH, s8k = 12, 13
    sX = 36
    sP = 40
    sRB = 44
    sM = 48
    sOV = 56
    sK = 58
    sQ0 = 60
    sL2E = 62
    sFB = 64
    vLane = 1
    vD, vS, vE = 16, 20, 24
    vA, vB = 26, 27
    vXo0, vXo1, vWo = 28, 29, 30
    t0, t1, t2 = 12, 13, 14
    vFr = 16
    e(f"""
    s_cmp_ge_u32 s2, 256
    s_cbranch_scc1 k1_end
    """)
    stamp1(0)
    e(f"""
    s_load_dwordx16 s[16:31], s[0:1], 0
    s_load_dwordx2 s[32:33], s[0:1], 80
    v_lshrrev_b32 {v(t0)}, 6, v0
    v_and_b32 {v(vLane)}, 63, v0
    v_readfirstlane_b32 {s(sW)}, {v(t0)}
    v_lshlrev_b32 {v(t1)}, 2, v0
    v_mov_b32 {v(t2)}, 0
    s_lshr_b32 {s(sC)}, s2, 4
    s_lshl_b32 {s(sC)}, {s(sC)}, 3
    s_and_b32 {s(sT)}, s2, 7
    s_add_u32 {s(sC)}, {s(sC)}, {s(sT)}
    s_cmp_ge_u32 {s(sW)}, 4
    s_cbranch_scc1 k1_nozero
    ds_write_b32 {v(t1)}, {v(t2)}
    k1_nozero:
    s_bfe_u32 {s(sHB)}, s2, 0x10003
    s_mul_i32 {s(sT)}, {s(sC)}, {CH*4}
    v_lshlrev_b32 {v(vA)}, 4, v0
    v_add_u32 {v(vA)}, {s(sT)}, {v(vA)}
    v_lshrrev_b32 {v(vB)}, 1, {v(vA)}
    s_movk_i32 {s(sLim)}, {CH//4}
    s_cmp_eq_u32 {s(sC)}, 127
    s_cselect_b32 {s(sLim)}, {(E-127*CH)//4}, {s(sLim)}
    v_cmp_gt_u32 {s(sEM,2)}, {s(sLim)}, v0
    """)
    c("x tile -> LDS (2 DMA per wave), chunk p of a row holds source chunk p ^ (row & 15)")
    e(f"""
    v_lshrrev_b32 {v(t0)}, 4, {v(vLane)}
    s_and_b32 {s(sT2)}, {s(sW)}, 1
    s_lshl_b32 {s(sT2)}, {s(sT2)}, 3
    v_add_u32 {v(vXo0)}, {s(sT2)}, {v(t0)}
    v_xor_b32 {v(vXo0)}, {v(vXo0)}, {v(vLane)}
    v_and_b32 {v(vXo0)}, 15, {v(vXo0)}
    v_and_b32 {v(vXo1)}, 48, {v(vLane)}
    v_or_b32 {v(vXo0)}, {v(vXo0)}, {v(vXo1)}
    v_lshlrev_b32 {v(vXo0)}, 4, {v(vXo0)}
    v_xor_b32 {v(vXo1)}, 64, {v(vXo0)}
    """)
    c("w1[0:128] -> LDS as two column halves [128][256 B]; 32-B block b of row k holds source block b ^ ((k & 3) | (k >> 3 & 1) << 2)")
    e(f"""
    s_lshr_b32 {s(sWr)}, s2, 3
    s_add_u32 {s(sWr)}, {s(sWr)}, {s(sW)}
    s_and_b32 {s(sWr)}, {s(sWr)}, 15
    s_and_b32 {s(sT2)}, {s(sWr)}, 1
    s_lshl_b32 {s(sT2)}, {s(sT2)}, 3
    v_lshl_or_b32 {v(t1)}, {v(t0)}, 1, {s(sT2)}
    v_xor_b32 {v(t1)}, {v(t1)}, {v(vLane)}
    v_and_b32 {v(t1)}, 15, {v(t1)}
    v_lshlrev_b32 {v(t1)}, 4, {v(t1)}
    v_lshl_or_b32 {v(vWo)}, {v(t0)}, 9, {v(t1)}
    s_lshl_b32 {s(sT2)}, {s(sWr)}, 12
    v_add_u32 {v(vWo)}, {s(sT2)}, {v(vWo)}
    s_lshl_b32 {s(sWr)}, {s(sWr)}, 11
    s_mul_i32 {s(sT)}, s2, {NPB*256}
    s_movk_i32 {s(sX+2)}, {NPB*256}
    s_cmp_eq_u32 s2, 255
    s_cselect_b32 {s(sX+2)}, {(N-255*NPB)*256}, {s(sX+2)}
    s_mov_b32 {s(sX+3)}, 0x20000
    s_lshl_b32 {s(sP+2)}, {s(sX+2)}, 1
    s_mov_b32 {s(sP+3)}, 0x20000
    s_cmp_eq_u32 {s(sW)}, 15
    s_cbranch_scc1 k1_frag
    s_mov_b64 exec, {s(sEM,2)}
    s_waitcnt lgkmcnt(0)
    s_cbranch_execz k1_noedge
    global_load_dwordx4 {v(vD,4)}, {v(vA)}, s[22:23]
    global_load_dwordx4 {v(vS,4)}, {v(vA)}, s[20:21]
    global_load_dwordx2 {v(vE,2)}, {v(vB)}, s[18:19]
    s_branch k1_noedge
    """)
    c("wave 15: one MFMA A-fragment of W1b^T (workgroups 0..63) or W2^T (64..127), or the scaled w1 row 256 and b1 (128)")
    c("hidden unit 128h + 16t + j lives at table position 128h + 8j + t")
    e(f"""
    k1_frag:
    s_cmp_gt_u32 s2, 128
    s_waitcnt lgkmcnt(0)
    s_cbranch_scc1 k1_noedge
    v_lshrrev_b32 {v(t1)}, 5, {v(vLane)}
    s_cmp_ge_u32 s2, 64
    s_cbranch_scc1 k1_frag2
    """)
    e(f"""
    v_and_b32 {v(vA)}, 3, {v(vLane)}
    v_lshlrev_b32 {v(vA)}, 5, {v(vA)}
    v_bfe_u32 {v(t2)}, {v(vLane)}, 3, 1
    v_lshl_add_u32 {v(vA)}, {v(t2)}, 7, {v(vA)}
    v_and_b32 {v(t2)}, 4, {v(vLane)}
    v_add_u32 {v(vA)}, {v(vA)}, {v(t2)}
    v_bfe_u32 {v(t2)}, {v(vLane)}, 4, 1
    v_lshl_add_u32 {v(vA)}, {v(t2)}, 1, {v(vA)}
    v_lshl_add_u32 {v(vA)}, {v(t1)}, 12, {v(vA)}
    s_and_b32 {s(sOV)}, s2, 7
    s_lshl_b32 {s(sOV)}, {s(sOV)}, 13
    s_and_b32 {s(sT2)}, s2, 24
    s_add_u32 {s(sOV)}, {s(sOV)}, {s(sT2)}
    s_and_b32 {s(sT2)}, s2, 32
    s_lshl_b32 {s(sT2)}, {s(sT2)}, 3
    s_add_u32 {s(sOV)}, {s(sOV)}, {s(sT2)}
    s_add_u32 {s(sOV)}, {s(sOV)}, 65536
    v_add_u32 {v(vA)}, {s(sOV)}, {v(vA)}
    """)
    for m in range(8):
        e(f"global_load_ushort {v(vFr+m)}, {v(vA)}, s[24:25] offset:{m*512}")
    e(f"""
    s_branch k1_noedge
    k1_frag2:
    s_cmp_eq_u32 s2, 128
    s_cbranch_scc1 k1_frag3
    v_bfe_u32 {v(vA)}, {v(vLane)}, 2, 1
    v_lshlrev_b32 {v(vA)}, 5, {v(vA)}
    v_bfe_u32 {v(t2)}, {v(vLane)}, 3, 2
    v_lshl_add_u32 {v(vA)}, {v(t2)}, 3, {v(vA)}
    v_and_b32 {v(t2)}, 3, {v(vLane)}
    v_lshl_add_u32 {v(vA)}, {v(t2)}, 1, {v(vA)}
    v_lshl_add_u32 {v(vA)}, {v(t1)}, 8, {v(vA)}
    s_and_b32 {s(sOV)}, s2, 7
    s_lshl_b32 {s(sOV)}, {s(sOV)}, 9
    s_and_b32 {s(sT2)}, s2, 8
    s_lshl_b32 {s(sT2)}, {s(sT2)}, 12
    s_add_u32 {s(sOV)}, {s(sOV)}, {s(sT2)}
    s_and_b32 {s(sT2)}, s2, 48
    s_lshl_b32 {s(sT2)}, {s(sT2)}, 2
    s_add_u32 {s(sOV)}, {s(sOV)}, {s(sT2)}
    s_add_u32 {s(sOV)}, {s(sOV)}, 4096
    v_add_u32 {v(vA)}, {s(sOV)}, {v(vA)}
    """)
    for m in range(0, 8, 2):
        e(f"global_load_ushort {v(vFr+m)}, {v(vA)}, s[28:29] offset:-4096")
        e(f"global_load_ushort {v(vFr+m+1)}, {v(vA)}, s[28:29]")
        if m < 6: e(f"v_add_u32 {v(vA)}, 0x2000, {v(vA)}")
    e(f"""
    s_branch k1_noedge
    k1_frag3:
    v_and_b32 {v(vA)}, 30, {v(vLane)}
    v_lshl_add_u32 {v(vA)}, {v(t1)}, 8, {v(vA)}
    v_and_b32 {v(t2)}, 1, {v(vLane)}
    v_lshl_add_u32 {v(vA)}, {v(t2)}, 7, {v(vA)}
    v_add_u32 {v(vB)}, {256*512}, {v(vA)}
    """)
    for m in range(4):
        e(f"global_load_ushort {v(vFr+m)}, {v(vB)}, s[24:25] offset:{32*m}")
    for m in range(4):
        e(f"global_load_ushort {v(vFr+4+m)}, {v(vA)}, s[26:27] offset:{32*m}")
    e(f"""
    k1_noedge:
    s_mov_b64 exec, -1
    s_add_u32 {s(sX)}, s16, {s(sT)}
    s_addc_u32 {s(sX+1)}, s17, 0
    s_lshl_b32 {s(sT2)}, {s(sW)}, 11
    s_add_u32 m0, {s(sT2)}, {K1_X}
    s_lshl_b32 {s(sT)}, {s(sT)}, 1
    s_cmp_ge_u32 {s(sW)}, 13
    s_barrier
    s_cbranch_scc1 k1_nox
    buffer_load_dwordx4 {v(vXo0)}, {s(sX,4)}, {s(sT2)} offen lds
    buffer_load_dwordx4 {v(vXo1)}, {s(sX,4)}, {s(sT2)} offen offset:1024 lds
    k1_nox:
    s_add_u32 m0, {s(sWr)}, {K1_W}
    s_add_u32 {s(sP)}, s32, {s(sT)}
    global_load_lds_dwordx4 {v(vWo)}, s[24:25]
    s_addc_u32 {s(sP+1)}, s33, 0
    s_add_u32 m0, {s(sWr)}, {K1_W - 1024}
    s_mul_i32 {s(sT)}, {s(sHB)}, {128*RS}
    global_load_lds_dwordx4 {v(vWo)}, s[24:25] offset:2048
    """)
    if "--b0w" in sys.argv: e("s_barrier")
    e(f"""
    s_add_u32 m0, {s(sWr)}, {K1_W + 32768 - 256}
    s_lshl_b32 {s(sT2)}, {s(sC)}, 8
    global_load_lds_dwordx4 {v(vWo)}, s[24:25] offset:256
    s_add_u32 m0, {s(sWr)}, {K1_W + 32768 - 1280}
    s_add_u32 {s(sT)}, {s(sT)}, {s(sT2)}
    global_load_lds_dwordx4 {v(vWo)}, s[24:25] offset:2304
    """)
    stamp1(1)
    if STAMP: e("s_mov_b32 s68, s67")
    c("record base: ws + WS_REC + hb*128*RS + c*256")
    e(f"""
    s_add_u32 {s(sT)}, {s(sT)}, {WS_REC}
    s_add_u32 {s(sRB)}, s32, {s(sT)}
    s_addc_u32 {s(sRB+1)}, s33, 0
    s_lshl_b32 {s(sHB)}, {s(sHB)}, 7
    s_movk_i32 {s(sK)}, -98
    s_movk_i32 {s(sK+1)}, 272
    s_mov_b32 {s(sL2E)}, {f32(-LOG2E)}
    s_mov_b32 {s(sL2E+1)}, {f32(-LOG2E)}
    s_cmp_ge_u32 {s(sW)}, 8
    s_cbranch_scc1 k1_adw
    """)
    vTB, vAB, vPO = 2, 10, 11
    c("waves 0..7: GEMM addresses (row group w & 3, column half w >> 2)")
    e(f"""
    s_lshr_b32 {s(sH)}, {s(sW)}, 2
    s_and_b32 {s(sT)}, {s(sW)}, 3
    s_movk_i32 {s(s8k)}, 0x2000
    v_bfe_u32 {v(t1)}, {v(vLane)}, 2, 3
    v_lshlrev_b32 {v(vTB)}, 5, {v(t1)}
    v_and_b32 {v(t1)}, 3, {v(t1)}
    v_lshl_add_u32 {v(vTB)}, {v(t1)}, 8, {v(vTB)}
    v_lshl_add_u32 {v(vTB)}, {v(t0)}, 11, {v(vTB)}
    v_and_b32 {v(t1)}, 3, {v(vLane)}
    v_lshl_add_u32 {v(vTB)}, {v(t1)}, 3, {v(vTB)}
    s_lshl_b32 {s(sT2)}, {s(sH)}, 15
    s_add_u32 {s(sT2)}, {s(sT2)}, {K1_W}
    v_add_u32 {v(vTB)}, {s(sT2)}, {v(vTB)}
    """)
    for t in range(1, 8):
        e(f"v_xor_b32 {v(vTB+t)}, {t<<5}, {v(vTB)}")
    e(f"""
    v_and_b32 {v(t1)}, 15, {v(vLane)}
    v_xor_b32 {v(t2)}, {v(t0)}, {v(t1)}
    v_lshlrev_b32 {v(t2)}, 4, {v(t2)}
    v_lshl_add_u32 {v(vAB)}, {v(t1)}, 8, {v(t2)}
    s_lshl_b32 {s(sT2)}, {s(sT)}, 13
    s_add_u32 {s(sT2)}, {s(sT2)}, {K1_X}
    v_add_u32 {v(vAB)}, {s(sT2)}, {v(vAB)}
    v_lshlrev_b32 {v(vPO)}, 4, {v(t1)}
    v_lshl_add_u32 {v(vPO)}, {v(t0)}, 11, {v(vPO)}
    s_lshl_b32 {s(sT2)}, {s(sT)}, 14
    s_lshl_b32 {s(sT)}, {s(sH)}, 8
    s_add_u32 {s(sT2)}, {s(sT2)}, {s(sT)}
    v_add_u32 {v(vPO)}, {s(sT2)}, {v(vPO)}
    s_branch k1_ad
    """)
    vSA, vCA, vG0, vQ16 = 2, 3, 4, 11
    c("waves 8..15: record write-out addresses")
    e(f"""
    k1_adw:
    v_bfe_u32 {v(t1)}, v0, 4, 5
    v_and_b32 {v(t2)}, 15, v0
    v_lshlrev_b32 {v(t2)}, 4, {v(t2)}
    v_mad_u32_u24 {v(vSA)}, {v(t1)}, {s(sK+1)}, {v(t2)}
    v_lshlrev_b32 {v(vCA)}, 2, {v(t1)}
    s_mov_b32 {s(sT)}, {RS}
    v_mad_u32_u24 {v(vG0)}, {v(t1)}, {s(sT)}, {v(t2)}
    v_add_u32 {v(vG0+1)}, {32*RS}, {v(vG0)}
    v_add_u32 {v(vG0+2)}, {64*RS}, {v(vG0)}
    v_add_u32 {v(vG0+3)}, {96*RS}, {v(vG0)}
    v_and_b32 {v(vQ16)}, {GRAN}, {v(t2)}
    v_cmp_eq_u32 {s(sQ0,2)}, 0, {v(t2)}
    k1_ad:
    s_mov_b64 exec, {s(sEM,2)}
    s_cbranch_execz k1_sortdone
    v_mov_b32 {v(t2)}, 8
    s_waitcnt vmcnt(6)
    """)
    stamp1(2)
    vBin, vR, vRk, vT = 32, 36, 44, 48
    for i in range(4):
        e(f"v_mul_u32_u24 {v(vBin+i)}, 42800, {v(vD+i)}")
    for i in range(4):
        e(f"v_lshrrev_b32 {v(vBin+i)}, 22, {v(vBin+i)}")
    for i in range(4):
        e(f"v_mad_i32_i24 {v(vD+i)}, {v(vBin+i)}, {s(sK)}, {v(vD+i)}")
    for i in range(4):
        e(f"v_subrev_u32 {v(vBin+i)}, {s(sHB)}, {v(vBin+i)}")
    for i in range(4):
        e(f"v_cmp_gt_u32 vcc, 0x80, {v(vBin+i)}")
        e(f"v_lshlrev_b32 {v(vT+i)}, 2, {v(vBin+i)}")
        e(f"s_mov_b64 {s(sM+2*i,2)}, vcc")
    for i in range(4):
        e(f"s_mov_b64 exec, {s(sM+2*i,2)}")
        e(f"ds_add_rtn_u32 {v(vRk+i)}, {v(vT+i)}, {v(t2)} offset:{K1_CNT}")
    e(f"s_mov_b64 exec, {s(sEM,2)}")
    for i in range(4):
        e(f"v_mul_u32_u24 {v(vT+i)}, 335, {v(vS+i)}")
        e(f"v_lshlrev_b32 {v(vR+2*i)}, 9, {v(vS+i)}")
    for i in range(4):
        e(f"v_lshrrev_b32 {v(vT+i)}, 20, {v(vT+i)}")
        if i % 2 == 0: e(f"v_lshlrev_b32 {v(vS+i)}, 16, {v(vE+i//2)}")
        else:          e(f"v_and_b32 {v(vS+i)}, 0xffff0000, {v(vE+i//2)}")
    for i in range(4):
        e(f"v_lshl_add_u32 {v(vT+i)}, {v(vD+i)}, 3, {v(vT+i)}")
    for i in range(4):
        e(f"v_lshl_or_b32 {v(vR+2*i+1)}, {v(vT+i)}, 2, {v(vS+i)}")
    e(f"s_mov_b64 {s(sOV,2)}, 0")
    e("s_waitcnt lgkmcnt(0)")
    for i in range(4):
        e(f"""
        s_mov_b64 exec, {s(sM+2*i,2)}
        v_cmp_le_u32 vcc, 248, {v(vRk+i)}
        v_mad_u32_u24 {v(vT+i)}, {v(vBin+i)}, {s(sK+1)}, {v(vRk+i)}
        s_andn2_b64 exec, exec, vcc
        s_or_b64 {s(sOV,2)}, {s(sOV,2)}, vcc
        ds_write_b64 {v(vT+i)}, {v(vR+2*i,2)} offset:{K1_ST+8}
        """)
    e(f"""
    s_cmp_eq_u64 {s(sOV,2)}, 0
    s_cbranch_scc1 k1_sortdone
    """)
    c("rare: segment overflow -> append to this workgroup's overflow list, bin in the low bits of dword 0")
    e(f"""
    s_lshl_b32 {s(sT)}, s2, 15
    s_add_u32 {s(sT)}, {s(sT)}, {WS_OVF}
    s_add_u32 {s(sFB)}, s32, {s(sT)}
    s_addc_u32 {s(sFB+1)}, s33, 0
    s_mov_b64 exec, -1
    v_mov_b32 {v(t1)}, {K1_OC}
    """)
    for i in range(4):
        e(f"""
        s_mov_b64 exec, {s(sM+2*i,2)}
        v_cmp_le_u32 vcc, 248, {v(vRk+i)}
        s_and_b64 exec, exec, vcc
        s_cbranch_execz k1_ov{i}
        ds_add_rtn_u32 {v(vT+i)}, {v(t1)}, {v(t2)}
        v_add_u32 {v(vBin+i)}, {s(sHB)}, {v(vBin+i)}
        v_or_b32 {v(vR+2*i)}, {v(vR+2*i)}, {v(vBin+i)}
        s_waitcnt lgkmcnt(0)
        global_store_dwordx2 {v(vT+i)}, {v(vR+2*i,2)}, {s(sFB,2)}
        k1_ov{i}:
        """)
    e(f"""
    s_waitcnt vmcnt(0)
    k1_sortdone:
    s_mov_b64 exec, -1
    """)
    stamp1(3)
    e(f"""
    s_cmp_ge_u32 {s(sW)}, 8
    s_waitcnt vmcnt(2) lgkmcnt(0)
    """)
    stamp1(4)
    if STAMP: e(f"s_cmp_ge_u32 {s(sW)}, 8")
    e(f"""
    s_barrier
    s_cbranch_scc1 k1_wout
    """)
    stamp1(5)
    vAf, vBf, vAc = 16, 32, 64
    q = LQ()
    def ard(st):
        a = vAB
        if st > 0:
            a = t0 + (st - 1)
            e(f"v_xor_b32 {v(a)}, {st<<6}, {v(vAB)}")
        for rt in range(2):
            q.rd(("A", st), f"ds_read_b128 {v(vAf+8*(st&1)+4*rt,4)}, {v(a)} offset:{4096*rt}")
    def brd(f):
        st, t = f >> 3, f & 7
        for h in range(2):
            q.rd(("B", f), f"ds_read_b64_tr_b16 {v(vBf+4*t+2*h,2)}, {v(vTB+t)} offset:{8192*st+1024*h}")
    ard(0); ard(1)
    e(f"""
    s_cmp_eq_u32 {s(sH)}, 0
    s_cbranch_scc1 k1_g0
    s_waitcnt vmcnt(0)
    s_barrier
    k1_g0:
    """)
    stamp1(6)
    LA = 6
    B2AT = int(opt("b2at", 28))
    def mf(st, t, rt):
        acc = vAc + 32*rt + 4*t
        e(f"v_mfma_f32_16x16x32_bf16 {v(acc,4)}, {v(vAf+8*(st&1)+4*rt,4)}, {v(vBf+4*t,4)}, " + ("0" if st == 0 else v(acc,4)))
    def b2():
        e(f"""
        s_cmp_lg_u32 {s(sH)}, 0
        s_cbranch_scc1 k1_g1
        s_waitcnt vmcnt(0)
        s_barrier
        k1_g1:
        """)
    for f in range(5): brd(f)
    q.need({("A", 0)})
    brd(5)
    for f in range(32):
        st, t = f >> 3, f & 7
        q.need({("B", f), ("A", st)})
        mf(st, t, 0)
        if f + LA < 32 and st < 3: pass
        if st < 3: mf(st, t, 1)
        if f + LA < 32: brd(f + LA)
        if t == 7 and st + 2 < 4: ard(st + 2)
        if f + 1 == B2AT: b2()
    def scale(rt, t):
        a = vAc + 32*rt + 4*t
        for r in range(4): e(f"v_mul_f32 {v(a+r)}, {s(sL2E)}, {v(a+r)}")
    for t in range(8):
        mf(3, t, 1)
        if t >= 2: scale(0, t - 2)
    if B2AT > 32: b2()
    stamp1(7)
    scale(0, 6); scale(0, 7)
    def pack(rt, r, dst):
        for t in range(0, 8, 2):
            e(f"v_cvt_pk_bf16_f32 {v(dst+t//2)}, {v(vAc+32*rt+4*t+r)}, {v(vAc+32*rt+4*t+4+r)}")
        e(f"buffer_store_dwordx4 {v(dst,4)}, {v(vPO)}, {s(sP,4)}, {s(s8k) if rt else 0} offen offset:{512*r} {SC}")
    e(f"s_and_b32 {s(sT)}, {s(sW)}, 3")
    pack(0, 0, 32); pack(0, 1, 36)
    e(f"s_cmp_eq_u32 {s(sT)}, 3\ns_cbranch_scc1 k1_fin")
    pack(0, 2, 40); pack(0, 3, 44)
    for t in range(8):
        a = vAc + 32 + 4*t
        e(f"v_pk_mul_f32 {v(a,2)}, {s(sL2E,2)}, {v(a,2)}")
        e(f"v_pk_mul_f32 {v(a+2,2)}, {s(sL2E,2)}, {v(a+2,2)}")
    for r in range(4): pack(1, r, 48 + 4*r)
    e("s_branch k1_fin")
    vSt, vCn = 32, 48
    e("k1_wout:")
    stamp1(5)
    for i in range(4):
        e(f"ds_read_b32 {v(vCn+i)}, {v(vCA)} offset:{K1_CNT+128*i}")
        e(f"ds_read_b128 {v(vSt+4*i,4)}, {v(vSA)} offset:{K1_ST+32*272*i}")
    for i in range(4):
        e(f"""
        s_waitcnt lgkmcnt({6-2*i})
        v_cndmask_b32 {v(vSt+4*i)}, {v(vSt+4*i)}, {v(vCn+i)}, {s(sQ0,2)}
        v_cmp_le_u32 vcc, {v(vQ16)}, {v(vCn+i)}
        s_mov_b64 exec, vcc
        global_store_dwordx4 {v(vG0+i)}, {v(vSt+4*i,4)}, {s(sRB,2)} {SCR}
        s_mov_b64 exec, -1
        """)
    stamp1(6)
    e(f"""
    s_waitcnt vmcnt(4)
    s_barrier
    """)
    stamp1(7)
    c("overflow count of this workgroup")
    e(f"""
    s_cmp_lg_u32 {s(sW)}, 8
    s_cbranch_scc1 k1_w15
    v_mov_b32 {v(t1)}, {K1_OC}
    ds_read_b32 {v(t2)}, {v(t1)}
    s_lshl_b32 {s(sT)}, s2, 2
    s_add_u32 {s(sT)}, {s(sT)}, {WS_OVFC}
    v_mov_b32 {v(t1)}, {s(sT)}
    s_mov_b64 exec, 1
    s_waitcnt lgkmcnt(0)
    global_store_dword {v(t1)}, {v(t2)}, s[32:33]
    k1_w15:
    s_cmp_lg_u32 {s(sW)}, 15
    s_cbranch_scc1 k1_fin
    s_cmp_gt_u32 s2, 128
    s_cbranch_scc1 k1_fin
    s_lshl_b32 {s(sT)}, s2, 10
    s_add_u32 {s(sT)}, {s(sT)}, {WS_FRAG}
    v_lshl_add_u32 {v(t1)}, {v(vLane)}, 4, {s(sT)}
    s_cmp_eq_u32 s2, 128
    s_cbranch_scc1 k1_cst
    v_lshl_or_b32 v32, {v(vFr+1)}, 16, {v(vFr)}
    v_lshl_or_b32 v33, {v(vFr+3)}, 16, {v(vFr+2)}
    v_lshl_or_b32 v34, {v(vFr+5)}, 16, {v(vFr+4)}
    v_lshl_or_b32 v35, {v(vFr+7)}, 16, {v(vFr+6)}
    global_store_dwordx4 {v(t1)}, v[32:35], s[32:33]
    s_branch k1_fin
    k1_cst:
    """)
    for m in range(8): e(f"v_lshlrev_b32 {v(vFr+m)}, 16, {v(vFr+m)}")
    for m in range(8): e(f"v_mul_f32 {v(vFr+m)}, {s(sL2E)}, {v(vFr+m)}")
    e(f"""
    v_cvt_pk_bf16_f32 {v(vFr)}, {v(vFr)}, {v(vFr+1)}
    v_cvt_pk_bf16_f32 {v(vFr+1)}, {v(vFr+2)}, {v(vFr+3)}
    v_lshl_add_u32 {v(t2)}, {v(vLane)}, 3, {s(sT)}
    global_store_dwordx4 {v(t1)}, {v(vFr+4,4)}, s[32:33]
    global_store_dwordx2 {v(t2)}, {v(vFr,2)}, s[32:33] offset:1024
    k1_fin:
    """)
    stamp1(8)
    if STAMP:
        e("s_waitcnt vmcnt(0)")
        stamp1(9)
        stamp1(10)
        stamp_out(0, 11, sW)
    e(f"""
    k1_end:
    s_endpgm
    """)

L_ND, L_HIST, L_DEG, L_OWN, L_OVM, L_WT = 0, 1024, 1280, 1792, 2304, 2368
L_C2 = 3072
L_E = 7168
L_LIST = 16128
L_X = 34048
L_Q = 59648
QS, HSS = 1040, 528
K2_LDS = L_Q + NPB*QS
L_W2 = 16384
L_HS = 81920
L_TR = L_HS + NPB*HSS
assert L_TR + 12*2048 <= K2_LDS <= 163840
NULLREC = 0x7fffff00

def dpp_scan(r):
    for sh in (1, 2, 4, 8):
        e("s_nop 1")
        e(f"v_add_u32_dpp {v(r)}, {v(r)}, {v(r)} row_shr:{sh} row_mask:0xf bank_mask:0xf bound_ctrl:0")
    e("s_nop 1")
    e(f"v_add_u32_dpp {v(r)}, {v(r)}, {v(r)} row_bcast:15 row_mask:0xa bank_mask:0xf")
    e("s_nop 1")
    e(f"v_add_u32_dpp {v(r)}, {v(r)}, {v(r)} row_bcast:31 row_mask:0xc bank_mask:0xf")

def gen_k2():
    e("k2_kernel:")
    sW, sNN, sT, sT2, sN4, sOff, sCnt = 3, 4, 5, 6, 7, 8, 9
    sX = 36; sL = 40; sPS = 44
    RB = 48
    sM = 48
    sSel = 64; sFB = 66
    sCl = 72; sMask = 74
    sOff0 = 76
    nodeS = [10, 11, 12, 13, 14, 15, 96]
    sSc = 98
    vLane, vL8, vL16 = 1, 2, 3
    e(f"""
    s_cmp_ge_u32 s2, 256
    s_cbranch_scc1 k2_end
    """)
    stamp2(0)
    e(f"""
    s_load_dwordx16 s[16:31], s[0:1], 0
    s_load_dwordx2 s[32:33], s[0:1], 80
    s_load_dwordx2 s[34:35], s[0:1], 64
    v_lshrrev_b32 v4, 6, v0
    v_and_b32 {v(vLane)}, 63, v0
    v_readfirstlane_b32 {s(sW)}, v4
    v_lshlrev_b32 v5, 2, v0
    v_mov_b32 v6, 0
    ds_write_b32 v5, v6 offset:{L_C2}
    v_and_b32 v7, 0x301, v0
    v_cmp_eq_u32 vcc, 0, v7
    v_lshlrev_b32 {v(vL16)}, 4, {v(vLane)}
    v_lshlrev_b32 {v(vL8)}, 3, {v(vLane)}
    s_cmp_ge_u32 {s(sW)}, 12
    s_cbranch_scc1 k2_noinit
    v_cndmask_b32 v6, 0, 63, vcc
    v_cndmask_b32 v7, 0, 64, vcc
    v_add_u32 v6, v6, v7
    ds_write_b32 v5, v6
    k2_noinit:
    s_cmp_eq_u32 s2, 255
    s_cselect_b32 {s(sNN)}, {N-255*NPB}, {NPB}
    s_mov_b32 {s(sL+2)}, {RS}
    s_mov_b32 {s(sL+3)}, 0x20000
    s_lshl_b32 {s(sX+2)}, {s(sNN)}, 8
    s_mov_b32 {s(sX+3)}, 0x20000
    s_mul_i32 {s(sT)}, s2, {RS}
    s_add_u32 {s(sT)}, {s(sT)}, {WS_REC}
    s_mul_i32 {s(sT2)}, s2, {NPB*256}
    s_cmp_ge_u32 {s(sW)}, 8
    s_cbranch_scc1 k2_gemm
    """)
    def srds():
        e(f"""
        s_waitcnt lgkmcnt(0)
        s_add_u32 {s(sL)}, s32, {s(sT)}
        s_addc_u32 {s(sL+1)}, s33, 0
        s_add_u32 {s(sX)}, s16, {s(sT2)}
        s_addc_u32 {s(sX+1)}, s17, 0
        """)
    def wb_loads(vt, vw):
        e(f"""
        v_add_u32 {v(vt)}, {WS_CONST}, {v(vL16)}
        v_add_u32 {v(vt+1)}, {WS_CONST + 1024}, {v(vL8)}
        global_load_dwordx4 {v(vB1,4)}, {v(vt)}, s[32:33]
        global_load_dwordx2 {v(vw,2)}, {v(vt+1)}, s[32:33]
        """)
    vI, vW, vEA, vSel, vRaw, vEad = 4, 6, 8, 10, 12, 13
    vB1 = 52
    vQA = 92
    vU, vTt, vP, vN, vD, vQ = 16, 24, 28, 44, 72, 100
    vLs = 44
    sW2, sM0 = 84, 86
    def consts():
        c("constants: identity rows and byte selectors for the 4x4x4 MFMA")
        t0 = 60
        e(f"""
        s_mov_b32 {s(sPS)}, s32
        s_mov_b32 {s(sPS+1)}, s33
        s_mov_b32 {s(sPS+2)}, {N*512}
        s_mov_b32 {s(sPS+3)}, 0x20000
        s_mov_b32 {s(sSc)}, {f32(-LOG2E)}
        s_mov_b32 {s(sSc+1)}, {f32(-LOG2E)}
        s_mov_b32 {s(sMask)}, 0xffffff00
        s_mov_b32 {s(sMask+1)}, 0xffffff00
        s_mov_b32 s82, 0x21800000
        s_mov_b32 s83, 0x21800000
        s_lshl_b32 {s(sT2)}, {s(sW)}, 12
        s_add_u32 {s(sM0)}, {s(sT2)}, {L_W2}
        s_add_u32 {s(sT2)}, {s(sT2)}, {WS_FRAG + 65536}
        s_add_u32 {s(sW2)}, s32, {s(sT2)}
        s_addc_u32 {s(sW2+1)}, s33, 0
        v_and_b32 {v(t0)}, 1, {v(vLane)}
        v_cmp_eq_u32 vcc, 0, {v(t0)}
        v_mov_b32 {v(t0+1)}, 0x01000c0c
        v_mov_b32 {v(t0+2)}, 0x0c0c0100
        v_cndmask_b32 {v(t0+1)}, {v(t0+1)}, {v(t0+2)}, vcc
        v_and_b32 {v(t0)}, 2, {v(vLane)}
        v_cmp_eq_u32 vcc, 0, {v(t0)}
        v_mov_b32 {v(t0+2)}, 0x0c0c0c0c
        v_mov_b32 {v(t0+3)}, 0x3f80
        v_cndmask_b32 {v(vSel)}, {v(t0+2)}, {v(t0+1)}, vcc
        v_cndmask_b32 {v(vSel+1)}, {v(t0+1)}, {v(t0+2)}, vcc
        v_perm_b32 {v(vI)}, {v(t0+3)}, {v(t0+3)}, {v(vSel)}
        v_perm_b32 {v(vI+1)}, {v(t0+3)}, {v(t0+3)}, {v(vSel+1)}
        """)
    def qaddr():
        for i in range(7):
            e(f"""
            s_min_u32 {s(sT)}, {s(nodeS[i])}, {NPB-1}
            s_mul_i32 {s(sT)}, {s(sT)}, {QS}
            v_add_u32 {v(vQA+i)}, {s(sT)}, {v(vL16)}
            """)
        e(f"""
        v_add_u32 {v(vQA+7)}, {s(sOff)}, {v(vL8)}
        v_lshrrev_b32 {v(vEad)}, 2, {v(vLane)}
        s_lshr_b32 {s(sT)}, {s(sOff)}, 1
        v_lshl_add_u32 {v(vEad)}, {v(vEad)}, 1, {s(sT)}
        """)
    def offsets2(vT, vN4):
        c("sort wave w: list offsets per (phase, slot) of lists w and w+8; base = padded sum of the lower lists' degrees")
        e(f"""
        v_and_b32 {v(vT)}, 7, {v(vLane)}
        s_lshl_b32 {s(sT)}, {s(sW)}, 6
        v_lshl_add_u32 {v(vT+2)}, {v(vT)}, 3, {s(sT)}
        ds_read_b32 {v(vT+1)}, {v(vT+2)} offset:{L_ND}
        ds_read_b32 {v(vT+2)}, {v(vT+2)} offset:{L_ND+512}
        ds_read_b128 {v(vN4,4)}, {v(vL16)} offset:{L_ND}
        v_lshrrev_b32 {v(vT+4)}, 3, {v(vLane)}
        v_lshlrev_b32 {v(vT+4)}, 2, {v(vT+4)}
        v_lshlrev_b32 {v(vT)}, 18, {v(vT)}
        s_lshl_b32 {s(sT2)}, {s(sW)}, 2
        s_add_u32 s68, {s(sT2)}, 31
        s_sub_u32 {s(sT2)}, {s(sT2)}, 1
        s_and_b32 {s(sT2)}, {s(sT2)}, 63
        s_waitcnt lgkmcnt(1)
        v_lshl_add_u32 {v(vT+3)}, {v(vT+1)}, 5, {v(vT+4)}
        v_lshl_add_u32 {v(vT+4)}, {v(vT+2)}, 5, {v(vT+4)}
        ds_read_b32 {v(vT+5)}, {v(vT+3)} offset:{L_C2}
        ds_read_b32 {v(vT+6)}, {v(vT+4)} offset:{L_C2}
        s_waitcnt lgkmcnt(2)
        v_add_u32 {v(vT+8)}, {v(vN4+1)}, {v(vN4+3)}
        v_cmp_ne_u32 vcc, 127, {v(vT+1)}
        v_cmp_ne_u32 s[70:71], {v(vT+2)}, {v(vT+9)}
        """)
        steps = [f"row_shr:{sh} row_mask:0xf bank_mask:0xf bound_ctrl:0" for sh in (1, 2, 4, 8)] + ["row_bcast:15 row_mask:0xa bank_mask:0xf", "row_bcast:31 row_mask:0xc bank_mask:0xf"]
        Y, X = vT+8, vT+7
        for k, st in enumerate(steps):
            e(f"v_add_u32_dpp {v(Y)}, {v(Y)}, {v(Y)} {st}")
            e(f"v_readlane_b32 {s(nodeS[k])}, {v(vT+1)}, {k}")
            if k < 5: e("s_nop 0")
        e(f"""
        v_readlane_b32 {s(nodeS[6])}, {v(vT+1)}, 6
        v_readlane_b32 {s(sOff)}, {v(Y)}, {s(sT2)}
        v_readlane_b32 s69, {v(Y)}, s68
        s_waitcnt lgkmcnt(0)
        v_lshl_or_b32 {v(X)}, {v(vT+6)}, 16, {v(vT+5)}
        v_mov_b32 {v(vT+5)}, {v(X)}
        s_cmp_eq_u32 {s(sW)}, 0
        """)
        fill = [f"s_cselect_b32 {s(sOff)}, 0, {s(sOff)}", f"s_lshl_b32 {s(sT)}, {s(sW)}, 7",
                f"s_add_u32 {s(sT)}, {s(sT)}, 63", f"s_add_u32 {s(sOff)}, {s(sOff)}, {s(sT)}",
                f"s_andn2_b32 {s(sOff)}, {s(sOff)}, 63", f"s_add_u32 s69, s69, {s(sT)}",
                f"s_add_u32 s69, s69, 1024", f"s_andn2_b32 s69, s69, 63",
                f"s_lshl_b32 {s(sT)}, {s(sW)}, 3", "s_nop 0", "s_nop 0", "s_nop 0"]
        for k, st in enumerate(steps):
            e(f"v_add_u32_dpp {v(X)}, {v(X)}, {v(X)} {st}")
            e(fill[2*k]); e(fill[2*k+1])
        e(f"""
        v_readlane_b32 {s(sN4)}, {v(X)}, 63
        v_sub_u32 {v(X)}, {v(X)}, {v(vT+5)}
        v_and_b32 {v(vT+5)}, 0xffff, {v(X)}
        v_lshrrev_b32 {v(vT+6)}, 16, {v(X)}
        v_add3_u32 {v(vT+5)}, {v(vT+5)}, {s(sOff)}, {v(vT)}
        v_add3_u32 {v(vT+6)}, {v(vT+6)}, s69, {v(vT)}
        s_mov_b64 exec, vcc
        ds_write_b32 {v(vT+3)}, {v(vT+5)} offset:{L_C2}
        s_mov_b64 exec, s[70:71]
        ds_write_b32 {v(vT+4)}, {v(vT+6)} offset:{L_C2}
        s_lshr_b32 s68, {s(sN4)}, 16
        s_and_b32 {s(sN4)}, {s(sN4)}, 0xffff
        s_mov_b64 exec, 0xffff
        s_add_u32 {s(sT2)}, {s(sOff)}, {s(sN4)}
        v_lshl_add_u32 {v(vT)}, {v(vLane)}, 2, {s(sT2)}
        s_add_u32 {s(sT2)}, s69, s68
        v_lshl_add_u32 {v(vT+1)}, {v(vLane)}, 2, {s(sT2)}
        v_mov_b32 {v(vT+2)}, {NULLREC}
        v_mov_b32 {v(vT+3)}, {s(sT)}
        v_mov_b32 {v(vT+4)}, s69
        v_mov_b32 {v(vT+5)}, s68
        ds_write_b32 {v(vT)}, {v(vT+2)} offset:{L_LIST}
        ds_write_b32 {v(vT+1)}, {v(vT+2)} offset:{L_LIST}
        ds_write_b64 {v(vT+3)}, {v(vT+4,2)} offset:{L_WT}
        s_mov_b64 exec, -1
        s_waitcnt lgkmcnt(0)
        """)
    vRec, vHd, vRk, vAd, vT = 16, 32, 36, 44, 100
    c("waves 0..7: second-level sort of the bin's records")
    e(f"v_lshl_add_u32 v4, v4, 12, {v(vL16)}")
    srds()
    wb_loads(vT, vW)
    e("s_barrier")
    for j in range(4):
        e(f"buffer_load_dwordx4 {v(vRec+4*j,4)}, v4, {s(sL,4)}, 0 offen offset:{1024*j}")
    consts()
    e("s_barrier")
    stamp2(1)
    e(f"""
    v_and_b32 {v(vT)}, 0xf0, {v(vL16)}
    v_add_u32 {v(vT+1)}, 8, {v(vT)}
    v_cmp_ne_u32 {s(sSel,2)}, 0, {v(vT)}
    v_mov_b32 {v(vT+2)}, 4
    v_mov_b32 {v(vT+9)}, 127
    """)
    for j in range(4):
        e(f"""
        s_waitcnt vmcnt({3-j})
        v_mov_b32_dpp {v(vHd+j)}, {v(vRec+4*j)} row_newbcast:0 row_mask:0xf bank_mask:0xf
        v_and_b32 {v(vAd+2*j)}, 0xffff, {v(vRec+4*j+1)}
        v_and_b32 {v(vAd+2*j+1)}, 0xffff, {v(vRec+4*j+3)}
        v_cmp_le_u32 {s(sM+4*j,2)}, {v(vT)}, {v(vHd+j)}
        v_cmp_le_u32 {s(sM+4*j+2,2)}, {v(vT+1)}, {v(vHd+j)}
        s_and_b64 exec, {s(sM+4*j,2)}, {s(sSel,2)}
        s_mov_b64 {s(sM+4*j,2)}, exec
        ds_add_rtn_u32 {v(vRk+2*j)}, {v(vAd+2*j)}, {v(vT+2)} offset:{L_C2}
        s_mov_b64 exec, {s(sM+4*j+2,2)}
        ds_add_rtn_u32 {v(vRk+2*j+1)}, {v(vAd+2*j+1)}, {v(vT+2)} offset:{L_C2}
        s_mov_b64 exec, -1
        """)
    stamp2(2)
    e(f"""
    v_max3_u32 {v(vT+3)}, {v(vHd)}, {v(vHd+1)}, {v(vHd+2)}
    v_max_u32 {v(vT+3)}, {v(vT+3)}, {v(vHd+3)}
    v_cmp_lt_u32 vcc, 248, {v(vT+3)}
    s_cbranch_vccz k2_noovf
    """)
    c("rare: remember which chunks overflowed (bit c of OVM)")
    for j in range(4):
        e(f"""
        v_lshrrev_b32 {v(vT+3)}, 4, {v(vLane)}
        s_lshl_b32 {s(sT)}, {s(sW)}, 4
        s_add_u32 {s(sT)}, {s(sT)}, {4*j}
        v_add_u32 {v(vT+3)}, {s(sT)}, {v(vT+3)}
        v_lshlrev_b32 {v(vT+4)}, {v(vT+3)}, 1
        v_lshrrev_b32 {v(vT+3)}, 5, {v(vT+3)}
        v_lshlrev_b32 {v(vT+3)}, 2, {v(vT+3)}
        v_cmp_lt_u32 vcc, 248, {v(vHd+j)}
        s_mov_b64 exec, vcc
        ds_or_b32 {v(vT+3)}, {v(vT+4)} offset:{L_OVM}
        s_mov_b64 exec, -1
        """)
    e(f"""
    k2_noovf:
    s_waitcnt lgkmcnt(0)
    s_barrier
    """)
    stamp2(3)
    e(f"""
    s_cmp_lg_u32 {s(sW)}, 0
    s_cbranch_scc1 k2_noassign
    """)
    c("wave 0: rank the nodes by degree, deal them to (wave, slot) in snake order")
    a = 64; d = 80
    e(f"""
    v_lshlrev_b32 {v(vT)}, 5, {v(vLane)}
    ds_read_b128 {v(a,4)}, {v(vT)} offset:{L_C2}
    ds_read_b128 {v(a+4,4)}, {v(vT)} offset:{L_C2+16}
    ds_read_b128 {v(a+8,4)}, {v(vT)} offset:{L_C2+2048}
    ds_read_b128 {v(a+12,4)}, {v(vT)} offset:{L_C2+2064}
    v_add_u32 {v(vT+1)}, 64, {v(vLane)}
    v_cmp_gt_u32 s[68:69], {s(sNN)}, {v(vLane)}
    v_cmp_gt_u32 s[70:71], {s(sNN)}, {v(vT+1)}
    v_mov_b32 {v(vT+2)}, 1
    v_lshlrev_b32 {v(vT+3)}, 2, {v(vLane)}
    """)
    for i in range(2):
        b = a + 8*i
        e(f"""
        s_waitcnt lgkmcnt({2 if i == 0 else 1})
        v_add3_u32 {v(b)}, {v(b)}, {v(b+1)}, {v(b+2)}
        v_add3_u32 {v(b+3)}, {v(b+3)}, {v(b+4)}, {v(b+5)}
        v_add3_u32 {v(b)}, {v(b)}, {v(b+6)}, {v(b+7)}
        v_add_u32 {v(d+2*i+1)}, {v(b)}, {v(b+3)}
        v_min_u32 {v(d+4+i)}, 252, {v(d+2*i+1)}
        v_sub_u32 {v(d+4+i)}, 252, {v(d+4+i)}
        """)
        if i == 0:
            e(f"""
            s_mov_b64 exec, s[68:69]
            ds_add_rtn_u32 {v(d+6)}, {v(d+4)}, {v(vT+2)} offset:{L_HIST}
            s_mov_b64 exec, -1
            """)
        else:
            e(f"""
            s_mov_b64 exec, s[70:71]
            ds_add_rtn_u32 {v(d+7)}, {v(d+5)}, {v(vT+2)} offset:{L_HIST}
            s_mov_b64 exec, -1
            """)
    e(f"""
    ds_read_b32 {v(d+8)}, {v(vT+3)} offset:{L_HIST}
    v_mov_b32 {v(d)}, {v(vLane)}
    v_mov_b32 {v(d+2)}, {v(vT+1)}
    v_lshrrev_b32 {v(a)}, 2, {v(d+1)}
    v_lshrrev_b32 {v(a+1)}, 2, {v(d+3)}
    ds_write_b32 {v(vT+3)}, {v(a)} offset:{L_DEG}
    ds_write_b32 {v(vT+3)}, {v(a+1)} offset:{L_DEG+256}
    s_waitcnt lgkmcnt(2)
    v_mov_b32 {v(d+9)}, {v(d+8)}
    """)
    dpp_scan(d+8)
    e(f"""
    v_sub_u32 {v(d+8)}, {v(d+8)}, {v(d+9)}
    ds_bpermute_b32 {v(a+2)}, {v(d+4)}, {v(d+8)}
    ds_bpermute_b32 {v(a+3)}, {v(d+5)}, {v(d+8)}
    s_waitcnt lgkmcnt(0)
    """)
    for i in range(2):
        e(f"""
        v_add_u32 {v(a+2+i)}, {v(a+2+i)}, {v(d+6+i)}
        v_bfe_i32 {v(a+4+i)}, {v(a+2+i)}, 4, 1
        v_xor_b32 {v(a+4+i)}, {v(a+4+i)}, {v(a+2+i)}
        v_and_b32 {v(a+4+i)}, 15, {v(a+4+i)}
        v_lshrrev_b32 {v(a+2+i)}, 4, {v(a+2+i)}
        v_lshl_add_u32 {v(a+2+i)}, {v(a+4+i)}, 3, {v(a+2+i)}
        v_lshlrev_b32 {v(a+4+i)}, 3, {v(a+2+i)}
        s_mov_b64 exec, s[{68+2*i}:{69+2*i}]
        ds_write_b64 {v(a+4+i)}, {v(d+2*i,2)} offset:{L_ND}
        ds_write_b32 {v(vT+3)}, {v(a+2+i)} offset:{L_OWN+256*i}
        s_mov_b64 exec, -1
        """)
    e(f"""
    s_waitcnt lgkmcnt(0)
    k2_noassign:
    """)
    stamp2(4)
    e("s_barrier")
    stamp2(5)
    offsets2(vT, 64)
    e("s_barrier")
    stamp2(6)
    c("scatter the records into the per-wave lists in LDS")
    for i in range(8):
        e(f"s_mov_b64 exec, {s(sM+2*i,2)}")
        e(f"ds_read_b32 {v(vAd+i)}, {v(vAd+i)} offset:{L_C2}")
    e("s_mov_b64 exec, -1")
    qaddr()
    e("s_waitcnt lgkmcnt(0)")
    for i in range(8):
        e(f"""
        v_add_u32_sdwa {v(vRk+i)}, {v(vAd+i)}, {v(vRk+i)} dst_sel:DWORD dst_unused:UNUSED_PAD src0_sel:WORD_0 src1_sel:DWORD
        v_or_b32_sdwa {v(vRec+2*i)}, {v(vRec+2*i)}, {v(vAd+i)} dst_sel:DWORD dst_unused:UNUSED_PAD src0_sel:DWORD src1_sel:WORD_1
        v_lshrrev_b32 {v(vAd+i)}, 1, {v(vRk+i)}
        """)
    for i in range(8):
        e(f"""
        s_mov_b64 exec, {s(sM+2*i,2)}
        ds_write_b32 {v(vRk+i)}, {v(vRec+2*i)} offset:{L_LIST}
        ds_write_b16_d16_hi {v(vAd+i)}, {v(vRec+2*i+1)} offset:{L_E}
        """)
    e(f"""
    s_mov_b64 exec, -1
    s_waitcnt lgkmcnt(0)
    """)
    stamp2(7)
    e("s_barrier")
    stamp2(8)
    e("s_branch k2_join")
    vBA, vQW = 4, 6
    vBf, vAf, vAc = 8, 32, 64
    vGT = 8
    c("waves 8..15: Q = x[bin] @ w1[128:256] -> LDS (f32)")
    e(f"""
    k2_gemm:
    v_lshrrev_b32 {v(vGT)}, 4, {v(vLane)}
    v_xor_b32 {v(vGT)}, {v(vGT)}, {v(vLane)}
    v_and_b32 {v(vGT)}, 15, {v(vGT)}
    v_and_b32 {v(vGT+1)}, 48, {v(vLane)}
    v_or_b32 {v(vGT)}, {v(vGT)}, {v(vGT+1)}
    v_lshlrev_b32 {v(vGT)}, 4, {v(vGT)}
    v_xor_b32 {v(vGT+1)}, 64, {v(vGT)}
    v_xor_b32 {v(vGT+2)}, 0x80, {v(vGT)}
    v_xor_b32 {v(vGT+3)}, 0xc0, {v(vGT)}
    """)
    srds()
    e(f"""
    s_and_b32 {s(sT)}, {s(sW)}, 7
    s_lshl_b32 {s(sT2)}, {s(sT)}, 12
    s_add_u32 m0, {s(sT2)}, {L_X}
    s_cmp_ge_u32 {s(sT)}, 7
    s_cbranch_scc1 k2_nox
    buffer_load_dwordx4 {v(vGT)}, {s(sX,4)}, {s(sT2)} offen lds
    s_cmp_ge_u32 {s(sT)}, 6
    s_cbranch_scc1 k2_nox
    buffer_load_dwordx4 {v(vGT+1)}, {s(sX,4)}, {s(sT2)} offen offset:1024 lds
    buffer_load_dwordx4 {v(vGT+2)}, {s(sX,4)}, {s(sT2)} offen offset:2048 lds
    buffer_load_dwordx4 {v(vGT+3)}, {s(sX,4)}, {s(sT2)} offen offset:3072 lds
    k2_nox:
    s_lshl_b32 {s(sT2)}, {s(sT)}, 13
    s_add_u32 {s(sT2)}, {s(sT2)}, {WS_FRAG + 4096}
    s_add_u32 {s(sFB)}, s32, {s(sT2)}
    s_addc_u32 {s(sFB+1)}, s33, 0
    s_barrier
    """)
    NF0 = int(opt("nf0", 3))
    for st in range(NF0):
        e(f"global_load_dwordx4 {v(vAf+4*st,4)}, {v(vL16)}, {s(sFB,2)} offset:{(st-4)*1024}")
    e(f"""
    v_and_b32 {v(vGT)}, 31, {v(vLane)}
    v_lshrrev_b32 {v(vGT+1)}, 5, {v(vLane)}
    v_mul_u32_u24 {v(vQW)}, {QS}, {v(vGT)}
    v_lshl_add_u32 {v(vQW)}, {v(vGT+1)}, 6, {v(vQW)}
    s_lshl_b32 {s(sT2)}, {s(sT)}, 7
    s_add_u32 {s(sT2)}, {s(sT2)}, {L_Q}
    v_add_u32 {v(vQW)}, {s(sT2)}, {v(vQW)}
    v_add_u32 {v(vQW+1)}, {64*QS}, {v(vQW)}
    v_cmp_gt_u32 {s(sSel,2)}, 2, {v(vGT)}
    v_xor_b32 {v(vGT+1)}, {v(vGT+1)}, {v(vLane)}
    v_and_b32 {v(vGT+1)}, 15, {v(vGT+1)}
    v_lshlrev_b32 {v(vGT+1)}, 4, {v(vGT+1)}
    v_lshl_add_u32 {v(vBA)}, {v(vGT)}, 8, {v(vGT+1)}
    v_mov_b32 {v(vBA+1)}, {v(vBA)}
    s_waitcnt vmcnt({NF0})
    s_barrier
    """)
    stamp2(1)
    AH = 5
    def bread(m):
        st, tl = m >> 2, m & 3
        if tl == 0 and st > 0: e(f"v_xor_b32 {v(vBA+1)}, {st<<5}, {v(vBA)}")
        e(f"ds_read_b128 {v(vBf+4*(m % 6),4)}, {v(vBA+1)} offset:{L_X+8192*tl}")
    for m in range(AH): bread(m)
    for st in range(NF0, 8):
        e(f"global_load_dwordx4 {v(vAf+4*st,4)}, {v(vL16)}, {s(sFB,2)} offset:{(st-4)*1024}")
    MB2 = int(opt("mb2", 15))
    for m in range(32):
        st, tl = m >> 2, m & 3
        if m + AH < 32: bread(m + AH)
        lg = min(AH, 31 - m)
        if tl == 0: e(f"s_waitcnt vmcnt({7 - st + (2 if st >= 6 else 0)}) lgkmcnt({lg})")
        else: e(f"s_waitcnt lgkmcnt({lg})")
        acc = vAc + 16*tl
        e(f"v_mfma_f32_32x32x16_bf16 {v(acc,16)}, {v(vAf+4*st,4)}, {v(vBf+4*(m % 6),4)}, " + ("0" if st == 0 else v(acc,16)))
        if m == MB2:
            stamp2(2); e("s_barrier"); stamp2(3)
        if m == 23:
            wb_loads(vAf, 48)
    stamp2(4); e("s_barrier"); stamp2(5)
    e("s_nop 5")
    for tl in range(4):
        acc = vAc + 16*tl
        if tl == 3: e(f"s_mov_b64 exec, {s(sSel,2)}")
        for r in range(4):
            e(f"ds_write_b128 {v(vQW+(tl>>1))}, {v(acc+4*r,4)} offset:{(tl&1)*32*QS+16*r}")
        if tl == 1:
            e("s_barrier"); stamp2(6)
    c("this wave's nodes, list offset and length")
    e(f"""
    s_mov_b64 exec, -1
    s_lshl_b32 {s(sT2)}, {s(sW)}, 6
    v_add_u32 {v(vAf)}, {s(sT2)}, {v(vL8)}
    s_lshl_b32 {s(sT2)}, {s(sT)}, 3
    v_mov_b32 {v(vAf+1)}, {s(sT2)}
    ds_read_b32 {v(vAf)}, {v(vAf)} offset:{L_ND}
    ds_read_b64 {v(vAf+2,2)}, {v(vAf+1)} offset:{L_WT}
    """)
    consts()
    e("s_waitcnt vmcnt(0) lgkmcnt(0)")
    e(f"v_mov_b64 {v(vW,2)}, v[48:49]")
    for i in range(7):
        e(f"v_readlane_b32 {s(nodeS[i])}, {v(vAf)}, {i}")
    e(f"v_readfirstlane_b32 {s(sOff)}, {v(vAf+2)}")
    e(f"v_readfirstlane_b32 {s(sN4)}, {v(vAf+3)}")
    qaddr()
    stamp2(7)
    e("s_barrier")
    stamp2(8)
    e("k2_join:")
    e(f"""
    s_setprio 3
    ds_read_b64 {v(vLs,2)}, {v(vQA+7)} offset:{L_LIST}
    ds_read_u16 {v(vTt)}, {v(vEad)} offset:{L_E}
    ds_read_u16 {v(vRaw)}, {v(vEad)} offset:{L_E+24}
    """)
    for i in range(7):
        e(f"ds_read_b128 {v(vQ+4*i,4)}, {v(vQA+i)} offset:{L_Q}")
    e(f"""
    s_waitcnt lgkmcnt(9)
    buffer_store_dwordx2 {v(vLs,2)}, {v(vQA+7)}, {s(sL,4)}, 0 offen
    """)
    for j in range(8):
        e(f"v_readlane_b32 {s(RB+j)}, {v(vLs+(j&1))}, {j>>1}")
    for j in range(0, 8, 2):
        e(f"s_and_b64 {s(88+j,2)}, {s(RB+j,2)}, {s(sMask,2)}")
    for j in range(8):
        e(f"buffer_load_dwordx2 {v(vP+2*j,2)}, {v(vL8)}, {s(sPS,4)}, {s(88+j)} offen")
    c("lists longer than 112 records: copy the rest")
    e(f"""
    s_add_u32 {s(sT)}, {s(sN4)}, 64
    s_cmp_le_u32 {s(sT)}, 512
    s_cbranch_scc1 k2_copied
    k2_copy:
    v_add_u32 {v(vQA+7)}, 512, {v(vQA+7)}
    ds_read_b64 {v(vLs+4,2)}, {v(vQA+7)} offset:{L_LIST}
    s_sub_u32 {s(sT)}, {s(sT)}, 512
    s_waitcnt lgkmcnt(0)
    buffer_store_dwordx2 {v(vLs+4,2)}, {v(vQA+7)}, {s(sL,4)}, 0 offen
    s_cmp_gt_u32 {s(sT)}, 512
    s_cbranch_scc1 k2_copy
    k2_copied:
    """)
    for j in range(8, 24):
        e(f"v_readlane_b32 {s(RB+j)}, {v(vLs+(j&1))}, {j>>1}")
    e(f"""
    s_waitcnt lgkmcnt(0)
    s_barrier
    """)
    stamp2(9)
    e(f"""
    v_perm_b32 {v(vEA)}, {v(vTt)}, {v(vTt)}, {v(vSel)}
    v_perm_b32 {v(vEA+1)}, {v(vTt)}, {v(vTt)}, {v(vSel+1)}
    """)
    for i in range(7):
        e(f"v_pk_fma_f32 {v(vQ+4*i,2)}, {v(vQ+4*i,2)}, {s(sSc,2)}, {v(vB1,2)}")
        e(f"v_pk_fma_f32 {v(vQ+4*i+2,2)}, {v(vQ+4*i+2,2)}, {s(sSc,2)}, {v(vB1+2,2)}")
    for i in range(0, 28, 2):
        e(f"v_mov_b64 {v(vN+i,2)}, 0")
        e(f"v_mov_b64 {v(vD+i,2)}, s[82:83]")
    e(f"""
    s_mov_b32 {s(sOff0)}, {s(sOff)}
    s_add_u32 {s(sOff)}, {s(sOff)}, 96
    s_lshr_b32 {s(sCnt)}, {s(sN4)}, 2
    s_and_b64 {s(sCl,2)}, {s(RB+8,2)}, {s(sMask,2)}
    s_set_gpr_idx_on {s(RB)}, gpr_idx(SRC2)
    v_mfma_f32_4x4x4_16b_bf16 {v(vU,4)}, {v(vEA,2)}, {v(vW,2)}, {v(vQ,4)} cbsz:4 abid:0
    s_set_gpr_idx_off
    s_waitcnt vmcnt(7)
    v_mfma_f32_4x4x4_16b_bf16 {v(vU,4)}, {v(vI,2)}, {v(vP,2)}, {v(vU,4)}
    buffer_load_dwordx2 {v(vP,2)}, {v(vL8)}, {s(sPS,4)}, {s(sCl)} offen
    s_setprio 2
    s_waitcnt vmcnt(7)
    """)
    stamp2(10)
    e(f"""
    s_sub_u32 {s(sCnt)}, {s(sCnt)}, 8
    s_cbranch_scc1 k2_tail0
    """)
    PRIO = "--noprio" not in sys.argv
    def R(i): return RB + (i % 24)
    def edge(i, tail):
        uC, uN = vU + 4*(i & 1), vU + 4*((i+1) & 1)
        pb = vP + 2*((i+1) % 8)
        e(f"""
        s_set_gpr_idx_on {s(R(i+1))}, gpr_idx(SRC2)
        v_mfma_f32_4x4x4_16b_bf16 {v(uN,4)}, {v(vEA,2)}, {v(vW,2)}, {v(vQ,4)} cbsz:4 abid:{(i+1) % 12}
        v_exp_f32 {v(vTt)}, {v(uC)}
        v_exp_f32 {v(vTt+1)}, {v(uC+1)}
        s_set_gpr_idx_off
        v_mfma_f32_4x4x4_16b_bf16 {v(uN,4)}, {v(vI,2)}, {v(pb,2)}, {v(uN,4)}
        v_exp_f32 {v(vTt+2)}, {v(uC+2)}
        v_exp_f32 {v(vTt+3)}, {v(uC+3)}
        """)
        if i % 12 == 10:
            e(f"v_perm_b32 {v(vEA)}, {v(vRaw)}, {v(vRaw)}, {v(vSel)}")
            e(f"v_perm_b32 {v(vEA+1)}, {v(vRaw)}, {v(vRaw)}, {v(vSel+1)}")
        if i == 14 and not tail:
            e(f"v_add_u32 {v(vEad)}, 48, {v(vEad)}")
        if not tail and "--nogather" not in sys.argv:
            e(f"buffer_load_dwordx2 {v(pb,2)}, {v(vL8)}, {s(sPS,4)}, {s(sCl + ((i+9) & 1))} offen")
        e(f"s_set_gpr_idx_on {s(R(i))}, gpr_idx(SRC0,SRC2,DST)")
        for h in range(2): e(f"v_pk_fma_f32 {v(vN+2*h,2)}, {v(vN+2*h,2)}, {v(vTt+2*h,2)}, {v(vN+2*h,2)}")
        for h in range(2): e(f"v_pk_fma_f32 {v(vN+2*h,2)}, {v(vD+2*h,2)}, {v(uC+2*h,2)}, {v(vN+2*h,2)}")
        for h in range(2): e(f"v_pk_fma_f32 {v(vD+2*h,2)}, {v(vD+2*h,2)}, {v(vTt+2*h,2)}, {v(vD+2*h,2)}")
        k = i % 8
        vm = 7 if not tail else 10 - k
        if k == 5: e(f"s_waitcnt vmcnt({vm}) lgkmcnt(0)")
        else: e(f"s_waitcnt vmcnt({vm})")
        if tail: return
        if i % 2 == 0:
            e(f"s_and_b64 {s(sCl,2)}, {s(R(i+10),2)}, {s(sMask,2)}")
        if k == 3 and PRIO:
            b = i // 8
            e(f"""
            s_cmp_lt_u32 {s(sCl)}, {9390*512}
            s_cbranch_scc1 k2_pr{b}
            s_setprio 1
            s_cmp_lt_u32 {s(sCl)}, {2*9390*512}
            s_cbranch_scc1 k2_pr{b}
            s_setprio 0
            k2_pr{b}:
            """)
        if k == 7:
            e(f"""
            s_buffer_load_dwordx8 {s(R(i-7),8)}, {s(sL,4)}, {s(sOff)}
            s_add_u32 {s(sOff)}, {s(sOff)}, 32
            """)
            if i == 15: e(f"ds_read_u16 {v(vRaw)}, {v(vEad)} offset:{L_E}")
            if i == 23: e(f"ds_read_u16 {v(vRaw)}, {v(vEad)} offset:{L_E+24}")
            e(f"s_sub_u32 {s(sCnt)}, {s(sCnt)}, 8")
            if i < 23: e(f"s_cbranch_scc1 k2_tail{(i+1)//8}")
            else: e("s_cbranch_scc0 k2_loop")
    e("k2_loop:")
    for i in range(24):
        edge(i, False)
    for b in range(3):
        e(f"k2_tail{b}:")
        e(f"""
        s_set_gpr_idx_off
        s_mov_b32 m0, {s(sM0)}
        s_add_u32 {s(sCnt)}, {s(sCnt)}, 8
        """)
        for j in range(4):
            e(f"global_load_lds_dwordx4 {v(vL16)}, {s(sW2,2)} offset:{1024*j}")
        for k in range(7):
            e(f"""
            s_sub_u32 {s(sCnt)}, {s(sCnt)}, 1
            s_cbranch_scc1 k2_loopdone
            """)
            edge(8*b + k, True)
        if b < 2: e("s_branch k2_loopdone")
    e(f"""
    k2_loopdone:
    s_set_gpr_idx_off
    s_setprio 0
    """)
    stamp2(11)
    c("sums = N / D ; z = sum N*D is inf / nan when a product ran out of range")
    e(f"""
    v_mov_b32 {v(vU)}, 0
    ds_read_b128 {v(vTt,4)}, {v(vU)} offset:{L_OVM}
    v_pk_mul_f32 {v(vU+2,2)}, {v(vN,2)}, {v(vD,2)}
    """)
    for i in range(2, 28, 2):
        e(f"v_pk_fma_f32 {v(vU+2,2)}, {v(vN+i,2)}, {v(vD+i,2)}, {v(vU+2,2)}")
    for i in range(28):
        e(f"v_rcp_f32 {v(vD+i)}, {v(vD+i)}")
    e(f"""
    v_add_f32 {v(vU+2)}, {v(vU+2)}, {v(vU+3)}
    v_mov_b32 {v(vU+3)}, 0x207
    v_cmp_class_f32 s[80:81], {v(vU+2)}, {v(vU+3)}
    """)
    for i in range(0, 28, 2):
        e(f"v_pk_mul_f32 {v(vN+i,2)}, {v(vN+i,2)}, {v(vD+i,2)}")
    def safe_edge(sRec, sClean):
        e(f"""
        s_and_b32 {s(sClean)}, {s(sRec)}, 0xffffff00
        buffer_load_dwordx2 {v(vP,2)}, {v(vL8)}, {s(sPS,4)}, {s(sClean)} offen
        s_waitcnt lgkmcnt(0)
        v_perm_b32 {v(vEA)}, {v(vRaw)}, {v(vRaw)}, {v(vSel)}
        v_perm_b32 {v(vEA+1)}, {v(vRaw)}, {v(vRaw)}, {v(vSel+1)}
        s_set_gpr_idx_on {s(sRec)}, gpr_idx(SRC2)
        s_nop 1
        v_mfma_f32_4x4x4_16b_bf16 {v(vU,4)}, {v(vEA,2)}, {v(vW,2)}, {v(vQ,4)}
        s_set_gpr_idx_off
        s_waitcnt vmcnt(0)
        s_nop 1
        v_mfma_f32_4x4x4_16b_bf16 {v(vU,4)}, {v(vI,2)}, {v(vP,2)}, {v(vU,4)}
        s_nop 7
        """)
        for r in range(4): e(f"v_exp_f32 {v(vU+4+r)}, {v(vU+r)}")
        e("s_nop 1")
        for r in range(4): e(f"v_add_f32 {v(vU+4+r)}, 1.0, {v(vU+4+r)}")
        for r in range(4): e(f"v_rcp_f32 {v(vU+4+r)}, {v(vU+4+r)}")
        e(f"""
        s_set_gpr_idx_on {s(sRec)}, gpr_idx(SRC2,DST)
        v_pk_fma_f32 {v(vN,2)}, {v(vU,2)}, {v(vU+4,2)}, {v(vN,2)}
        v_pk_fma_f32 {v(vN+2,2)}, {v(vU+2,2)}, {v(vU+6,2)}, {v(vN+2,2)}
        s_set_gpr_idx_off
        """)
    e(f"""
    s_waitcnt vmcnt(0) lgkmcnt(0)
    v_or_b32 {v(vU+1)}, {v(vTt)}, {v(vTt+1)}
    v_or3_b32 {v(vU+1)}, {v(vU+1)}, {v(vTt+2)}, {v(vTt+3)}
    v_cmp_ne_u32 vcc, 0, {v(vU+1)}
    s_or_b64 vcc, vcc, s[80:81]
    s_cbranch_scc0 k2_epi
    s_cmp_eq_u64 s[80:81], 0
    s_cbranch_scc1 k2_ovf
    """)
    c("rare: redo the list edge by edge with one division per edge")
    for i in range(0, 28, 2):
        e(f"v_mov_b64 {v(vN+i,2)}, 0")
    e(f"""
    s_add_u32 s57, {s(sOff0)}, {s(sN4)}
    k2_redo:
    s_cmp_ge_u32 {s(sOff0)}, s57
    s_cbranch_scc1 k2_ovf
    s_buffer_load_dword s60, {s(sL,4)}, {s(sOff0)}
    s_lshr_b32 s58, {s(sOff0)}, 1
    v_mov_b32 {v(vRaw)}, s58
    ds_read_u16 {v(vRaw)}, {v(vRaw)} offset:{L_E}
    s_add_u32 {s(sOff0)}, {s(sOff0)}, 4
    s_waitcnt lgkmcnt(0)
    """)
    safe_edge(60, 61)
    e("s_branch k2_redo")
    c("rare: edges that did not fit their segment; scan the overflow lists of the flagged chunks")
    e(f"""
    k2_ovf:
    v_readfirstlane_b32 s48, {v(vTt)}
    v_readfirstlane_b32 s49, {v(vTt+1)}
    v_readfirstlane_b32 s50, {v(vTt+2)}
    v_readfirstlane_b32 s51, {v(vTt+3)}
    s_add_u32 s52, s32, {WS_OVF}
    s_addc_u32 s53, s33, 0
    s_mov_b32 s54, {WS_OVFC + 1024 - WS_OVF}
    s_mov_b32 s55, 0x20000
    s_mov_b32 s56, 0
    k2_ov_chunk:
    s_and_b32 s57, s48, 1
    s_lshr_b64 s[48:49], s[48:49], 1
    s_lshl_b32 s58, s50, 31
    s_or_b32 s49, s49, s58
    s_lshr_b64 s[50:51], s[50:51], 1
    s_cmp_eq_u32 s57, 0
    s_cbranch_scc1 k2_ov_next
    """)
    e(K1_WG_OF_CHUNK)
    e(f"""
    s_lshl_b32 s58, s57, 2
    s_add_u32 s58, s58, {WS_OVFC - WS_OVF}
    s_buffer_load_dword s59, s[52:55], s58
    s_lshl_b32 s57, s57, 15
    s_waitcnt lgkmcnt(0)
    s_min_u32 s59, s59, {CH*8}
    s_add_u32 s59, s59, s57
    k2_ov_rec:
    s_cmp_ge_u32 s57, s59
    s_cbranch_scc1 k2_ov_next
    s_buffer_load_dwordx2 s[60:61], s[52:55], s57
    s_add_u32 s57, s57, 8
    s_waitcnt lgkmcnt(0)
    s_and_b32 s58, s60, 0xff
    s_cmp_lg_u32 s58, s2
    s_cbranch_scc1 k2_ov_rec
    s_bfe_u32 s58, s61, 0x70005
    s_lshl_b32 s58, s58, 2
    v_mov_b32 {v(vTt)}, s58
    ds_read_b32 {v(vTt+1)}, {v(vTt)} offset:{L_OWN}
    s_waitcnt lgkmcnt(0)
    v_readfirstlane_b32 s62, {v(vTt+1)}
    s_lshr_b32 s63, s62, 3
    s_cmp_lg_u32 s63, {s(sW)}
    s_cbranch_scc1 k2_ov_rec
    v_mov_b32 {v(vTt+1)}, 1
    s_mov_b64 exec, 1
    ds_add_u32 {v(vTt)}, {v(vTt+1)} offset:{L_DEG}
    s_mov_b64 exec, -1
    s_and_b32 s62, s62, 7
    s_lshl_b32 s62, s62, 2
    s_and_b32 s60, s60, 0xfffffe00
    s_or_b32 s60, s60, s62
    s_lshr_b32 s61, s61, 16
    v_mov_b32 {v(vRaw)}, s61
    """)
    safe_edge(60, 61)
    e(f"""
    s_branch k2_ov_rec
    k2_ov_next:
    s_add_u32 s56, s56, 1
    s_cmp_lt_u32 s56, 128
    s_cbranch_scc1 k2_ov_chunk
    k2_epi:
    """)
    vE0 = 4
    c("b2 row for the degree term: lanes < 32 hold b2[32*ot + pi(lane)]")
    e(f"""
    s_and_b32 {s(sT)}, {s(sW)}, 3
    s_lshl_b32 {s(sT2)}, {s(sT)}, 14
    v_add_u32 {v(vE0+11)}, {s(sT2)}, {v(vL16)}
    v_bfe_u32 {v(vE0)}, {v(vLane)}, 2, 1
    v_lshlrev_b32 {v(vE0)}, 5, {v(vE0)}
    v_bfe_u32 {v(vE0+1)}, {v(vLane)}, 3, 2
    v_lshl_add_u32 {v(vE0)}, {v(vE0+1)}, 3, {v(vE0)}
    v_and_b32 {v(vE0+1)}, 3, {v(vLane)}
    v_lshl_add_u32 {v(vE0)}, {v(vE0+1)}, 1, {v(vE0)}
    s_lshl_b32 {s(sT)}, {s(sT)}, 6
    v_add_u32 {v(vE0)}, {s(sT)}, {v(vE0)}
    v_mov_b32 {v(vE0+3)}, 0
    s_mov_b32 exec_hi, 0
    global_load_ushort {v(vE0+3)}, {v(vE0)}, s[30:31]
    s_mov_b64 exec, -1
    s_mov_b32 {s(sSc)}, {f32(-LN2)}
    s_mov_b32 {s(sSc+1)}, {f32(-LN2)}
    """)
    for i in range(7):
        a4 = vN + 4*i
        e(f"""
        s_cmp_eq_u32 {s(nodeS[i])}, 127
        s_cbranch_scc1 k2_hsdone
        v_pk_mul_f32 {v(a4,2)}, {s(sSc,2)}, {v(a4,2)}
        v_pk_mul_f32 {v(a4+2,2)}, {s(sSc,2)}, {v(a4+2,2)}
        s_mul_i32 {s(sT2)}, {s(nodeS[i])}, {HSS}
        s_add_u32 {s(sT2)}, {s(sT2)}, {L_HS}
        v_cvt_pk_bf16_f32 {v(a4)}, {v(a4)}, {v(a4+1)}
        v_cvt_pk_bf16_f32 {v(a4+1)}, {v(a4+2)}, {v(a4+3)}
        v_add_u32 {v(a4+2)}, {s(sT2)}, {v(vL8)}
        ds_write_b64 {v(a4+2)}, {v(a4,2)}
        """)
    e(f"""
    k2_hsdone:
    v_and_b32 {v(vE0+12)}, 31, {v(vLane)}
    s_lshr_b32 {s(sT2)}, {s(sW)}, 2
    s_lshl_b32 {s(sT2)}, {s(sT2)}, 5
    v_add_u32 {v(vE0+4)}, {s(sT2)}, {v(vE0+12)}
    v_lshrrev_b32 {v(vE0+5)}, 5, {v(vLane)}
    v_lshlrev_b32 {v(vE0+7)}, 2, {v(vE0+4)}
    v_min_u32 {v(vE0+4)}, {NPB-1}, {v(vE0+4)}
    v_mul_u32_u24 {v(vE0+4)}, {HSS}, {v(vE0+4)}
    v_lshl_add_u32 {v(vE0+4)}, {v(vE0+5)}, 4, {v(vE0+4)}
    v_add_u32 {v(vE0+4)}, {L_HS}, {v(vE0+4)}
    s_lshl_b32 {s(sT2)}, {s(sT2)}, 8
    s_add_u32 {s(sT)}, {s(sT)}, {s(sT2)}
    v_lshrrev_b32 {v(vE0+6)}, 3, {v(vLane)}
    v_xor_b32 {v(vE0+6)}, {v(vE0+6)}, {v(vLane)}
    v_and_b32 {v(vE0+6)}, 3, {v(vE0+6)}
    v_lshrrev_b32 {v(vE0+13)}, 2, {v(vLane)}
    v_lshlrev_b32 {v(vE0+13)}, 8, {v(vE0+13)}
    v_lshl_add_u32 {v(vE0+6)}, {v(vE0+6)}, 4, {v(vE0+13)}
    v_add_u32 {v(vE0+6)}, {s(sT)}, {v(vE0+6)}
    v_add_u32 {v(vE0+15)}, 4096, {v(vE0+6)}
    s_lshl_b32 {s(sT2)}, {s(sW)}, 11
    s_add_u32 {s(sT)}, {s(sT2)}, {L_TR}
    s_sub_u32 {s(sT2)}, {s(sT2)}, {12*2048 - 4096}
    s_cmp_lt_u32 {s(sW)}, 12
    s_cselect_b32 {s(sT)}, {s(sT)}, {s(sT2)}
    v_add_u32 {v(vE0+14)}, {s(sT)}, {v(vL16)}
    v_bfe_u32 {v(vE0+13)}, {v(vLane)}, 1, 2
    v_lshlrev_b32 {v(vE0+5)}, 1, {v(vE0+5)}
    v_xor_b32 {v(vE0+13)}, {v(vE0+13)}, {v(vE0+5)}
    v_lshlrev_b32 {v(vE0+13)}, 4, {v(vE0+13)}
    v_lshl_add_u32 {v(vE0+12)}, {v(vE0+12)}, 6, {v(vE0+13)}
    v_add_u32 {v(vE0+12)}, {s(sT)}, {v(vE0+12)}
    v_xor_b32 {v(vE0+13)}, 16, {v(vE0+12)}
    s_mul_i32 {s(sT)}, s2, {NPB*256}
    s_add_u32 {s(sX)}, s34, {s(sT)}
    s_addc_u32 {s(sX+1)}, s35, 0
    s_waitcnt lgkmcnt(0)
    """)
    stamp2(12)
    e("s_barrier")
    stamp2(13)
    e(f"ds_read_b32 {v(vE0+7)}, {v(vE0+7)} offset:{L_DEG}")
    vHA, vHB, vO = 24, 56, 88
    def rd(st):
        e(f"ds_read_b128 {v(vHA+4*(st&7),4)}, {v(vE0+11)} offset:{L_W2 + 1024*st}")
        e(f"ds_read_b128 {v(vHB+4*(st&7),4)}, {v(vE0+4)} offset:{32*st}")
    for st in range(7): rd(st)
    e(f"""
    s_waitcnt vmcnt(0) lgkmcnt(14)
    v_lshl_or_b32 {v(vE0+2)}, {v(vE0+3)}, 16, {v(vE0+3)}
    v_cvt_f32_ubyte0 {v(vE0+8)}, {v(vE0+7)}
    v_and_b32 {v(vE0+9)}, 0xff00, {v(vE0+7)}
    v_and_b32 {v(vE0+10)}, 0xff0000, {v(vE0+7)}
    v_cvt_f32_u32 {v(vE0+9)}, {v(vE0+9)}
    v_cvt_f32_u32 {v(vE0+10)}, {v(vE0+10)}
    v_cvt_pk_bf16_f32 {v(vE0+8)}, {v(vE0+8)}, {v(vE0+9)}
    v_lshrrev_b32 {v(vE0+9)}, 16, {v(vE0+10)}
    s_nop 1
    v_mfma_f32_32x32x8_bf16 {v(vO,16)}, {v(vE0+2,2)}, {v(vE0+8,2)}, 0
    """)
    for st in range(16):
        e(f"s_waitcnt lgkmcnt({2*min(6, 15-st)})")
        e(f"v_mfma_f32_32x32x16_bf16 {v(vO,16)}, {v(vHA+4*(st&7),4)}, {v(vHB+4*(st&7),4)}, {v(vO,16)}")
        if st + 7 < 16: rd(st + 7)
    e("s_nop 11")
    for r in range(0, 16, 2):
        e(f"v_cvt_pk_bf16_f32 {v(vO+r//2)}, {v(vO+r)}, {v(vO+r+1)}")
    e(f"""
    ds_write_b128 {v(vE0+12)}, {v(vO,4)}
    ds_write_b128 {v(vE0+13)}, {v(vO+4,4)}
    ds_read_b128 {v(vO+8,4)}, {v(vE0+14)}
    ds_read_b128 {v(vO+12,4)}, {v(vE0+14)} offset:1024
    s_waitcnt lgkmcnt(1)
    buffer_store_dwordx4 {v(vO+8,4)}, {v(vE0+6)}, {s(sX,4)}, 0 offen
    s_waitcnt lgkmcnt(0)
    buffer_store_dwordx4 {v(vO+12,4)}, {v(vE0+15)}, {s(sX,4)}, 0 offen
    """)
    stamp2(14)
    if STAMP:
        e("s_waitcnt vmcnt(0)")
        stamp2(15)
        stamp_out(1, 16, sW)
    e(f"""
    k2_end:
    s_endpgm
    """)

def kd(name, vg, sg):
    return f""".amdhsa_kernel {name}
  .amdhsa_next_free_vgpr {vg}
  .amdhsa_next_free_sgpr {sg}
  .amdhsa_accum_offset {vg}
  .amdhsa_group_segment_fixed_size 0
  .amdhsa_kernarg_size 88
  .amdhsa_user_sgpr_count 2
  .amdhsa_user_sgpr_kernarg_segment_ptr 1
  .amdhsa_system_sgpr_workgroup_id_x 1
.end_amdhsa_kernel"""

hdr = f"""; Edge-featured MPNN: out = segment_sum(silu([x[src], x[dst], e] @ w1 + b1) @ w2 + b2, dst)
; @launch kernel=k1_kernel grid=(256,1,1) block=(1024,1,1) lds={K1_LDS}
; @launch kernel=k2_kernel grid=(256,1,1) block=(1024,1,1) lds={K2_LDS}
.amdgcn_target "amdgcn-amd-amdhsa--gfx950"
.text
"""
out.append(".globl k1_kernel\n.p2align 8\n.type k1_kernel,@function")
gen_k1()
out.append(".globl k2_kernel\n.p2align 8\n.type k2_kernel,@function")
gen_k2()
out.append('.section .rodata,"a"\n.p2align 6')
out.append(kd("k1_kernel", 128, 102))
out.append(".p2align 6")
out.append(kd("k2_kernel", 128, 102))
text = hdr + "\n".join(l for l in out if l.strip() != "") + "\n"
dst = [a for a in sys.argv[1:] if not a.startswith("--")]
open(dst[0] if dst else "standalone__edge_featured_mpnn_mpnn__graph.s", "w").write(text)
```

```python
import sys, struct

N, E = 25000, 400000
NPB = 98
CH = 3128
RS = 36864
WS_P    = 0
WS_REC  = 0x0D00000
WS_OVF  = 0x1800000
WS_OVFC = 0x2000000
WS_FRAG = 0x2010000
WS_CONST = WS_FRAG + 131072
LOG2E = 1.4426950408889634
LN2 = 0.6931471805599453
def f32(x): return "0x%08x" % struct.unpack("<I", struct.pack("<f", x))[0]

out = []
def e(s=""):
    for line in s.split("\n"):
        out.append("    " + line.strip() if line.strip() and not line.strip().endswith(":") else line.strip())
def c(s): out.append("    ; " + s)
def v(a, n=1): return f"v{a}" if n == 1 else f"v[{a}:{a+n-1}]"
def s(a, n=1): return f"s{a}" if n == 1 else f"s[{a}:{a+n-1}]"

K1_WG_OF_CHUNK = """
s_lshr_b32 s57, s56, 3
s_lshl_b32 s57, s57, 1
s_lshr_b32 s58, s2, 7
s_add_u32 s57, s57, s58
s_lshl_b32 s57, s57, 3
s_and_b32 s58, s56, 7
s_add_u32 s57, s57, s58
"""
def opt(name, dflt):
    for a in sys.argv[1:]:
        if a.startswith(f"--{name}="): return a.split("=")[1]
    return dflt
STAMP = "--stamp" in sys.argv
WS_STAMP = 0x3000000
def stamp1(i):
    if STAMP:
        e(f"s_memrealtime s[100:101]\ns_waitcnt lgkmcnt(0)\ns_mov_b32 s{66+i}, s100")
        if i in (0, 9): e(f"s_memtime s[100:101]\ns_waitcnt lgkmcnt(0)\ns_mov_b32 s{77 + (i == 9)}, s100")
def stamp2(i):
    if STAMP:
        if i == 0: e(f"s_memrealtime s[100:101]\ns_waitcnt lgkmcnt(0)\ns_mov_b32 s97, s100")
        else: e(f"s_memrealtime s[100:101]\ns_waitcnt lgkmcnt(0)\nv_writelane_b32 v0, s100, {i}")
        if i in (10, 11): e(f"s_memtime s[100:101]\ns_waitcnt lgkmcnt(0)\nv_writelane_b32 v0, s100, {i+6}")
def stamp_out(k, n, sW):
    if STAMP:
        e("s_mov_b64 exec, -1")
        if k == 0:
            for i in range(n): e(f"v_writelane_b32 v0, s{66+i}, {i}")
        else:
            e("v_writelane_b32 v0, s97, 0")
        e(f"""
        s_lshl_b32 s100, s2, 4
        s_add_u32 s100, s100, s{sW}
        s_lshl_b32 s100, s100, 7
        s_add_u32 s100, s100, {WS_STAMP + k*0x80000}
        v_lshlrev_b32 v2, 2, v1
        v_add_u32 v2, s100, v2
        s_mov_b32 exec_hi, 0
        global_store_dword v2, v0, s[32:33]
        """)

K1_CNT, K1_OC, K1_ST, K1_X = 0, 512, 1024, 35840
K1_W = K1_X + 104*256
K1_LDS = K1_W + 65536
SC = opt("sc", "sc1")
SCR = opt("scr", "sc1")
GRAN = int(opt("gran", 0xc0))

class LQ:
    def __init__(self): self.q = []
    def rd(self, tag, txt): e(txt); self.q.append(tag)
    def need(self, tags):
        idx = [i for i, t in enumerate(self.q) if t in tags]
        if not idx: return
        n = len(self.q) - 1 - max(idx)
        assert n <= 15
        e(f"s_waitcnt lgkmcnt({n})")
        self.q = self.q[max(idx)+1:]

def gen_k1():
    e("k1_kernel:")
    sW, sC, sHB, sLim, sT, sT2, sWr = 3, 4, 5, 6, 7, 8, 9
    sEM = 10
    sH, s8k = 12, 13
    sX = 36
    sP = 40
    sRB = 44
    sM = 48
    sOV = 56
    sK = 58
    sQ0 = 60
    sL2E = 62
    sFB = 64
    vLane = 1
    vD, vS, vE = 16, 20, 24
    vA, vB = 26, 27
    vXo0, vXo1, vWo = 28, 29, 30
    t0, t1, t2 = 12, 13, 14
    vFr = 16
    e(f"""
    s_cmp_ge_u32 s2, 256
    s_cbranch_scc1 k1_end
    """)
    stamp1(0)
    e(f"""
    s_load_dwordx16 s[16:31], s[0:1], 0
    s_load_dwordx2 s[32:33], s[0:1], 80
    v_lshrrev_b32 {v(t0)}, 6, v0
    v_and_b32 {v(vLane)}, 63, v0
    v_readfirstlane_b32 {s(sW)}, {v(t0)}
    v_lshlrev_b32 {v(t1)}, 2, v0
    v_mov_b32 {v(t2)}, 0
    s_lshr_b32 {s(sC)}, s2, 4
    s_lshl_b32 {s(sC)}, {s(sC)}, 3
    s_and_b32 {s(sT)}, s2, 7
    s_add_u32 {s(sC)}, {s(sC)}, {s(sT)}
    s_cmp_ge_u32 {s(sW)}, 4
    s_cbranch_scc1 k1_nozero
    ds_write_b32 {v(t1)}, {v(t2)}
    k1_nozero:
    s_bfe_u32 {s(sHB)}, s2, 0x10003
    s_mul_i32 {s(sT)}, {s(sC)}, {CH*4}
    v_lshlrev_b32 {v(vA)}, 4, v0
    v_add_u32 {v(vA)}, {s(sT)}, {v(vA)}
    v_lshrrev_b32 {v(vB)}, 1, {v(vA)}
    s_movk_i32 {s(sLim)}, {CH//4}
    s_cmp_eq_u32 {s(sC)}, 127
    s_cselect_b32 {s(sLim)}, {(E-127*CH)//4}, {s(sLim)}
    v_cmp_gt_u32 {s(sEM,2)}, {s(sLim)}, v0
    """)
    c("x tile -> LDS (2 DMA per wave), chunk p of a row holds source chunk p ^ (row & 15)")
    e(f"""
    v_lshrrev_b32 {v(t0)}, 4, {v(vLane)}
    s_and_b32 {s(sT2)}, {s(sW)}, 1
    s_lshl_b32 {s(sT2)}, {s(sT2)}, 3
    v_add_u32 {v(vXo0)}, {s(sT2)}, {v(t0)}
    v_xor_b32 {v(vXo0)}, {v(vXo0)}, {v(vLane)}
    v_and_b32 {v(vXo0)}, 15, {v(vXo0)}
    v_and_b32 {v(vXo1)}, 48, {v(vLane)}
    v_or_b32 {v(vXo0)}, {v(vXo0)}, {v(vXo1)}
    v_lshlrev_b32 {v(vXo0)}, 4, {v(vXo0)}
    v_xor_b32 {v(vXo1)}, 64, {v(vXo0)}
    """)
    c("w1[0:128] -> LDS as two column halves [128][256 B]; 32-B block b of row k holds source block b ^ ((k & 3) | (k >> 3 & 1) << 2)")
    e(f"""
    s_lshr_b32 {s(sWr)}, s2, 3
    s_add_u32 {s(sWr)}, {s(sWr)}, {s(sW)}
    s_and_b32 {s(sWr)}, {s(sWr)}, 15
    s_and_b32 {s(sT2)}, {s(sWr)}, 1
    s_lshl_b32 {s(sT2)}, {s(sT2)}, 3
    v_lshl_or_b32 {v(t1)}, {v(t0)}, 1, {s(sT2)}
    v_xor_b32 {v(t1)}, {v(t1)}, {v(vLane)}
    v_and_b32 {v(t1)}, 15, {v(t1)}
    v_lshlrev_b32 {v(t1)}, 4, {v(t1)}
    v_lshl_or_b32 {v(vWo)}, {v(t0)}, 9, {v(t1)}
    s_lshl_b32 {s(sT2)}, {s(sWr)}, 12
    v_add_u32 {v(vWo)}, {s(sT2)}, {v(vWo)}
    s_lshl_b32 {s(sWr)}, {s(sWr)}, 11
    s_mul_i32 {s(sT)}, s2, {NPB*256}
    s_movk_i32 {s(sX+2)}, {NPB*256}
    s_cmp_eq_u32 s2, 255
    s_cselect_b32 {s(sX+2)}, {(N-255*NPB)*256}, {s(sX+2)}
    s_mov_b32 {s(sX+3)}, 0x20000
    s_lshl_b32 {s(sP+2)}, {s(sX+2)}, 1
    s_mov_b32 {s(sP+3)}, 0x20000
    s_cmp_eq_u32 {s(sW)}, 15
    s_cbranch_scc1 k1_frag
    s_mov_b64 exec, {s(sEM,2)}
    s_waitcnt lgkmcnt(0)
    s_cbranch_execz k1_noedge
    global_load_dwordx4 {v(vD,4)}, {v(vA)}, s[22:23]
    global_load_dwordx4 {v(vS,4)}, {v(vA)}, s[20:21]
    global_load_dwordx2 {v(vE,2)}, {v(vB)}, s[18:19]
    s_branch k1_noedge
    """)
    c("wave 15: one MFMA A-fragment of W1b^T (workgroups 0..63) or W2^T (64..127), or the scaled w1 row 256 and b1 (128)")
    c("hidden unit 128h + 16t + j lives at table position 128h + 8j + t")
    e(f"""
    k1_frag:
    s_cmp_gt_u32 s2, 128
    s_waitcnt lgkmcnt(0)
    s_cbranch_scc1 k1_noedge
    v_lshrrev_b32 {v(t1)}, 5, {v(vLane)}
    s_cmp_ge_u32 s2, 64
    s_cbranch_scc1 k1_frag2
    """)
    e(f"""
    v_and_b32 {v(vA)}, 3, {v(vLane)}
    v_lshlrev_b32 {v(vA)}, 5, {v(vA)}
    v_bfe_u32 {v(t2)}, {v(vLane)}, 3, 1
    v_lshl_add_u32 {v(vA)}, {v(t2)}, 7, {v(vA)}
    v_and_b32 {v(t2)}, 4, {v(vLane)}
    v_add_u32 {v(vA)}, {v(vA)}, {v(t2)}
    v_bfe_u32 {v(t2)}, {v(vLane)}, 4, 1
    v_lshl_add_u32 {v(vA)}, {v(t2)}, 1, {v(vA)}
    v_lshl_add_u32 {v(vA)}, {v(t1)}, 12, {v(vA)}
    s_and_b32 {s(sOV)}, s2, 7
    s_lshl_b32 {s(sOV)}, {s(sOV)}, 13
    s_and_b32 {s(sT2)}, s2, 24
    s_add_u32 {s(sOV)}, {s(sOV)}, {s(sT2)}
    s_and_b32 {s(sT2)}, s2, 32
    s_lshl_b32 {s(sT2)}, {s(sT2)}, 3
    s_add_u32 {s(sOV)}, {s(sOV)}, {s(sT2)}
    s_add_u32 {s(sOV)}, {s(sOV)}, 65536
    v_add_u32 {v(vA)}, {s(sOV)}, {v(vA)}
    """)
    for m in range(8):
        e(f"global_load_ushort {v(vFr+m)}, {v(vA)}, s[24:25] offset:{m*512}")
    e(f"""
    s_branch k1_noedge
    k1_frag2:
    s_cmp_eq_u32 s2, 128
    s_cbranch_scc1 k1_frag3
    v_bfe_u32 {v(vA)}, {v(vLane)}, 2, 1
    v_lshlrev_b32 {v(vA)}, 5, {v(vA)}
    v_bfe_u32 {v(t2)}, {v(vLane)}, 3, 2
    v_lshl_add_u32 {v(vA)}, {v(t2)}, 3, {v(vA)}
    v_and_b32 {v(t2)}, 3, {v(vLane)}
    v_lshl_add_u32 {v(vA)}, {v(t2)}, 1, {v(vA)}
    v_lshl_add_u32 {v(vA)}, {v(t1)}, 8, {v(vA)}
    s_and_b32 {s(sOV)}, s2, 7
    s_lshl_b32 {s(sOV)}, {s(sOV)}, 9
    s_and_b32 {s(sT2)}, s2, 8
    s_lshl_b32 {s(sT2)}, {s(sT2)}, 12
    s_add_u32 {s(sOV)}, {s(sOV)}, {s(sT2)}
    s_and_b32 {s(sT2)}, s2, 48
    s_lshl_b32 {s(sT2)}, {s(sT2)}, 2
    s_add_u32 {s(sOV)}, {s(sOV)}, {s(sT2)}
    s_add_u32 {s(sOV)}, {s(sOV)}, 4096
    v_add_u32 {v(vA)}, {s(sOV)}, {v(vA)}
    """)
    for m in range(0, 8, 2):
        e(f"global_load_ushort {v(vFr+m)}, {v(vA)}, s[28:29] offset:-4096")
        e(f"global_load_ushort {v(vFr+m+1)}, {v(vA)}, s[28:29]")
        if m < 6: e(f"v_add_u32 {v(vA)}, 0x2000, {v(vA)}")
    e(f"""
    s_branch k1_noedge
    k1_frag3:
    v_and_b32 {v(vA)}, 30, {v(vLane)}
    v_lshl_add_u32 {v(vA)}, {v(t1)}, 8, {v(vA)}
    v_and_b32 {v(t2)}, 1, {v(vLane)}
    v_lshl_add_u32 {v(vA)}, {v(t2)}, 7, {v(vA)}
    v_add_u32 {v(vB)}, {256*512}, {v(vA)}
    """)
    for m in range(4):
        e(f"global_load_ushort {v(vFr+m)}, {v(vB)}, s[24:25] offset:{32*m}")
    for m in range(4):
        e(f"global_load_ushort {v(vFr+4+m)}, {v(vA)}, s[26:27] offset:{32*m}")
    def wdma(h, fill):
        e(f"""
        s_add_u32 m0, {s(sWr)}, {K1_W + h*(32768 - 256)}
        {fill[0]}
        global_load_lds_dwordx4 {v(vWo)}, s[24:25] offset:{256*h}
        s_add_u32 m0, {s(sWr)}, {K1_W + h*(32768 - 256) - 1024}
        {fill[1]}
        global_load_lds_dwordx4 {v(vWo)}, s[24:25] offset:{2048 + 256*h}
        """)
    e(f"""
    k1_noedge:
    s_mov_b64 exec, -1
    s_cmp_lt_u32 {s(sW)}, 13
    s_cbranch_scc1 k1_now
    """)
    wdma(0, ("s_nop 0", "s_nop 0")); wdma(1, ("s_nop 0", "s_nop 0"))
    e(f"""
    k1_now:
    s_add_u32 {s(sX)}, s16, {s(sT)}
    s_addc_u32 {s(sX+1)}, s17, 0
    s_lshl_b32 {s(sT2)}, {s(sW)}, 11
    s_add_u32 m0, {s(sT2)}, {K1_X}
    s_lshl_b32 {s(sT)}, {s(sT)}, 1
    s_cmp_ge_u32 {s(sW)}, 13
    s_barrier
    s_cbranch_scc1 k1_nox
    buffer_load_dwordx4 {v(vXo0)}, {s(sX,4)}, {s(sT2)} offen lds
    buffer_load_dwordx4 {v(vXo1)}, {s(sX,4)}, {s(sT2)} offen offset:1024 lds
    k1_nox:
    s_add_u32 {s(sP)}, s32, {s(sT)}
    s_addc_u32 {s(sP+1)}, s33, 0
    s_mul_i32 {s(sT)}, {s(sHB)}, {128*RS}
    s_lshl_b32 {s(sT2)}, {s(sC)}, 8
    s_add_u32 {s(sT)}, {s(sT)}, {s(sT2)}
    """)
    stamp1(1)
    if STAMP: e("s_mov_b32 s68, s67")
    c("record base: ws + WS_REC + hb*128*RS + c*256")
    e(f"""
    s_add_u32 {s(sT)}, {s(sT)}, {WS_REC}
    s_add_u32 {s(sRB)}, s32, {s(sT)}
    s_addc_u32 {s(sRB+1)}, s33, 0
    s_lshl_b32 {s(sHB)}, {s(sHB)}, 7
    s_movk_i32 {s(sK)}, -98
    s_movk_i32 {s(sK+1)}, 272
    s_mov_b32 {s(sL2E)}, {f32(-LOG2E)}
    s_mov_b32 {s(sL2E+1)}, {f32(-LOG2E)}
    s_cmp_ge_u32 {s(sW)}, 8
    s_cbranch_scc1 k1_adw
    """)
    vTB, vAB, vPO = 2, 10, 11
    c("waves 0..7: GEMM addresses (row group w & 3, column half w >> 2)")
    e(f"""
    s_lshr_b32 {s(sH)}, {s(sW)}, 2
    s_and_b32 {s(sT)}, {s(sW)}, 3
    s_movk_i32 {s(s8k)}, 0x2000
    v_bfe_u32 {v(t1)}, {v(vLane)}, 2, 3
    v_lshlrev_b32 {v(vTB)}, 5, {v(t1)}
    v_and_b32 {v(t1)}, 3, {v(t1)}
    v_lshl_add_u32 {v(vTB)}, {v(t1)}, 8, {v(vTB)}
    v_lshl_add_u32 {v(vTB)}, {v(t0)}, 11, {v(vTB)}
    v_and_b32 {v(t1)}, 3, {v(vLane)}
    v_lshl_add_u32 {v(vTB)}, {v(t1)}, 3, {v(vTB)}
    s_lshl_b32 {s(sT2)}, {s(sH)}, 15
    s_add_u32 {s(sT2)}, {s(sT2)}, {K1_W}
    v_add_u32 {v(vTB)}, {s(sT2)}, {v(vTB)}
    """)
    for t in range(1, 8):
        e(f"v_xor_b32 {v(vTB+t)}, {t<<5}, {v(vTB)}")
    e(f"""
    v_and_b32 {v(t1)}, 15, {v(vLane)}
    v_xor_b32 {v(t2)}, {v(t0)}, {v(t1)}
    v_lshlrev_b32 {v(t2)}, 4, {v(t2)}
    v_lshl_add_u32 {v(vAB)}, {v(t1)}, 8, {v(t2)}
    s_lshl_b32 {s(sT2)}, {s(sT)}, 13
    s_add_u32 {s(sT2)}, {s(sT2)}, {K1_X}
    v_add_u32 {v(vAB)}, {s(sT2)}, {v(vAB)}
    v_lshlrev_b32 {v(vPO)}, 4, {v(t1)}
    v_lshl_add_u32 {v(vPO)}, {v(t0)}, 11, {v(vPO)}
    s_lshl_b32 {s(sT2)}, {s(sT)}, 14
    s_lshl_b32 {s(sT)}, {s(sH)}, 8
    s_add_u32 {s(sT2)}, {s(sT2)}, {s(sT)}
    v_add_u32 {v(vPO)}, {s(sT2)}, {v(vPO)}
    s_branch k1_ad
    """)
    vSA, vCA, vG0, vQ16 = 2, 3, 4, 11
    c("waves 8..15: record write-out addresses")
    e(f"""
    k1_adw:
    v_bfe_u32 {v(t1)}, v0, 4, 5
    v_and_b32 {v(t2)}, 15, v0
    v_lshlrev_b32 {v(t2)}, 4, {v(t2)}
    v_mad_u32_u24 {v(vSA)}, {v(t1)}, {s(sK+1)}, {v(t2)}
    v_lshlrev_b32 {v(vCA)}, 2, {v(t1)}
    s_mov_b32 {s(sT)}, {RS}
    v_mad_u32_u24 {v(vG0)}, {v(t1)}, {s(sT)}, {v(t2)}
    v_add_u32 {v(vG0+1)}, {32*RS}, {v(vG0)}
    v_add_u32 {v(vG0+2)}, {64*RS}, {v(vG0)}
    v_add_u32 {v(vG0+3)}, {96*RS}, {v(vG0)}
    v_and_b32 {v(vQ16)}, {GRAN}, {v(t2)}
    v_cmp_eq_u32 {s(sQ0,2)}, 0, {v(t2)}
    k1_ad:
    s_cmp_ge_u32 {s(sW)}, 13
    s_cbranch_scc1 k1_sortdone
    s_mov_b64 exec, {s(sEM,2)}
    s_cbranch_execnz k1_sort
    s_mov_b64 exec, -1
    """)
    wdma(0, ("s_nop 0", "s_nop 0"))
    e(f"""
    s_branch k1_w1
    k1_sort:
    v_mov_b32 {v(t2)}, 8
    s_waitcnt vmcnt(4)
    """)
    stamp1(2)
    vBin, vR, vRk, vT = 32, 36, 44, 48
    for i in range(4):
        e(f"v_mul_u32_u24 {v(vBin+i)}, 42800, {v(vD+i)}")
    for i in range(4):
        e(f"v_lshrrev_b32 {v(vBin+i)}, 22, {v(vBin+i)}")
    for i in range(4):
        e(f"v_mad_i32_i24 {v(vD+i)}, {v(vBin+i)}, {s(sK)}, {v(vD+i)}")
    for i in range(4):
        e(f"v_subrev_u32 {v(vBin+i)}, {s(sHB)}, {v(vBin+i)}")
    for i in range(4):
        e(f"v_cmp_gt_u32 vcc, 0x80, {v(vBin+i)}")
        e(f"v_lshlrev_b32 {v(vT+i)}, 2, {v(vBin+i)}")
        e(f"s_mov_b64 {s(sM+2*i,2)}, vcc")
    for i in range(4):
        e(f"s_mov_b64 exec, {s(sM+2*i,2)}")
        e(f"ds_add_rtn_u32 {v(vRk+i)}, {v(vT+i)}, {v(t2)} offset:{K1_CNT}")
    wdma(0, ("s_mov_b64 exec, -1", "s_nop 0"))
    e("s_waitcnt vmcnt(4)")
    for i in range(4):
        e(f"v_mul_u32_u24 {v(vT+i)}, 335, {v(vS+i)}")
        e(f"v_lshlrev_b32 {v(vR+2*i)}, 9, {v(vS+i)}")
    for i in range(4):
        e(f"v_lshrrev_b32 {v(vT+i)}, 20, {v(vT+i)}")
        if i % 2 == 0: e(f"v_lshlrev_b32 {v(vS+i)}, 16, {v(vE+i//2)}")
        else:          e(f"v_and_b32 {v(vS+i)}, 0xffff0000, {v(vE+i//2)}")
    for i in range(4):
        e(f"v_lshl_add_u32 {v(vT+i)}, {v(vD+i)}, 3, {v(vT+i)}")
    for i in range(4):
        e(f"v_lshl_or_b32 {v(vR+2*i+1)}, {v(vT+i)}, 2, {v(vS+i)}")
    e(f"s_mov_b64 {s(sOV,2)}, 0")
    e("s_waitcnt lgkmcnt(0)")
    for i in range(4):
        e(f"""
        s_mov_b64 exec, {s(sM+2*i,2)}
        v_cmp_le_u32 vcc, 248, {v(vRk+i)}
        v_mad_u32_u24 {v(vT+i)}, {v(vBin+i)}, {s(sK+1)}, {v(vRk+i)}
        s_andn2_b64 exec, exec, vcc
        s_or_b64 {s(sOV,2)}, {s(sOV,2)}, vcc
        ds_write_b64 {v(vT+i)}, {v(vR+2*i,2)} offset:{K1_ST+8}
        """)
    e(f"""
    s_cmp_eq_u64 {s(sOV,2)}, 0
    s_cbranch_scc1 k1_w1
    """)
    c("rare: segment overflow -> append to this workgroup's overflow list, bin in the low bits of dword 0")
    e(f"""
    s_lshl_b32 {s(sT)}, s2, 15
    s_add_u32 {s(sT)}, {s(sT)}, {WS_OVF}
    s_add_u32 {s(sFB)}, s32, {s(sT)}
    s_addc_u32 {s(sFB+1)}, s33, 0
    s_mov_b64 exec, -1
    v_mov_b32 {v(t1)}, {K1_OC}
    """)
    for i in range(4):
        e(f"""
        s_mov_b64 exec, {s(sM+2*i,2)}
        v_cmp_le_u32 vcc, 248, {v(vRk+i)}
        s_and_b64 exec, exec, vcc
        s_cbranch_execz k1_ov{i}
        ds_add_rtn_u32 {v(vT+i)}, {v(t1)}, {v(t2)}
        v_add_u32 {v(vBin+i)}, {s(sHB)}, {v(vBin+i)}
        v_or_b32 {v(vR+2*i)}, {v(vR+2*i)}, {v(vBin+i)}
        s_waitcnt lgkmcnt(0)
        global_store_dwordx2 {v(vT+i)}, {v(vR+2*i,2)}, {s(sFB,2)}
        k1_ov{i}:
        """)
    e("k1_w1:")
    wdma(1, ("s_mov_b64 exec, -1", "s_nop 0"))
    e("k1_sortdone:")
    stamp1(3)
    e(f"""
    s_cmp_ge_u32 {s(sW)}, 8
    s_waitcnt vmcnt(2) lgkmcnt(0)
    """)
    stamp1(4)
    if STAMP: e(f"s_cmp_ge_u32 {s(sW)}, 8")
    e(f"""
    s_barrier
    s_cbranch_scc1 k1_wout
    """)
    stamp1(5)
    vAf, vBf, vAc = 16, 32, 64
    q = LQ()
    def ard(st):
        a = vAB
        if st > 0:
            a = t0 + (st - 1)
            e(f"v_xor_b32 {v(a)}, {st<<6}, {v(vAB)}")
        for rt in range(2):
            q.rd(("A", st), f"ds_read_b128 {v(vAf+8*(st&1)+4*rt,4)}, {v(a)} offset:{4096*rt}")
    def brd(f):
        st, t = f >> 3, f & 7
        for h in range(2):
            q.rd(("B", f), f"ds_read_b64_tr_b16 {v(vBf+4*t+2*h,2)}, {v(vTB+t)} offset:{8192*st+1024*h}")
    ard(0); ard(1)
    e(f"""
    s_cmp_eq_u32 {s(sH)}, 0
    s_cbranch_scc1 k1_g0
    s_waitcnt vmcnt(0)
    s_barrier
    k1_g0:
    """)
    stamp1(6)
    LA = 6
    B2AT = int(opt("b2at", 28))
    def mf(st, t, rt):
        acc = vAc + 32*rt + 4*t
        e(f"v_mfma_f32_16x16x32_bf16 {v(acc,4)}, {v(vAf+8*(st&1)+4*rt,4)}, {v(vBf+4*t,4)}, " + ("0" if st == 0 else v(acc,4)))
    def b2():
        e(f"""
        s_cmp_lg_u32 {s(sH)}, 0
        s_cbranch_scc1 k1_g1
        s_waitcnt vmcnt(0)
        s_barrier
        k1_g1:
        """)
    for f in range(5): brd(f)
    q.need({("A", 0)})
    brd(5)
    for f in range(32):
        st, t = f >> 3, f & 7
        q.need({("B", f), ("A", st)})
        mf(st, t, 0)
        if f + LA < 32 and st < 3: pass
        if st < 3: mf(st, t, 1)
        if f + LA < 32: brd(f + LA)
        if t == 7 and st + 2 < 4: ard(st + 2)
        if f + 1 == B2AT: b2()
    def scale(rt, t):
        a = vAc + 32*rt + 4*t
        for r in range(4): e(f"v_mul_f32 {v(a+r)}, {s(sL2E)}, {v(a+r)}")
    for t in range(8):
        mf(3, t, 1)
        if t >= 2: scale(0, t - 2)
    if B2AT > 32: b2()
    stamp1(7)
    scale(0, 6); scale(0, 7)
    def pack(rt, r, dst):
        for t in range(0, 8, 2):
            e(f"v_cvt_pk_bf16_f32 {v(dst+t//2)}, {v(vAc+32*rt+4*t+r)}, {v(vAc+32*rt+4*t+4+r)}")
        e(f"buffer_store_dwordx4 {v(dst,4)}, {v(vPO)}, {s(sP,4)}, {s(s8k) if rt else 0} offen offset:{512*r} {SC}")
    e(f"s_and_b32 {s(sT)}, {s(sW)}, 3")
    pack(0, 0, 32); pack(0, 1, 36)
    e(f"s_cmp_eq_u32 {s(sT)}, 3\ns_cbranch_scc1 k1_fin")
    pack(0, 2, 40); pack(0, 3, 44)
    for t in range(8):
        a = vAc + 32 + 4*t
        e(f"v_pk_mul_f32 {v(a,2)}, {s(sL2E,2)}, {v(a,2)}")
        e(f"v_pk_mul_f32 {v(a+2,2)}, {s(sL2E,2)}, {v(a+2,2)}")
    for r in range(4): pack(1, r, 48 + 4*r)
    e("s_branch k1_fin")
    vSt, vCn = 32, 48
    e("k1_wout:")
    stamp1(5)
    for i in range(4):
        e(f"ds_read_b32 {v(vCn+i)}, {v(vCA)} offset:{K1_CNT+128*i}")
        e(f"ds_read_b128 {v(vSt+4*i,4)}, {v(vSA)} offset:{K1_ST+32*272*i}")
    for i in range(4):
        e(f"""
        s_waitcnt lgkmcnt({6-2*i})
        v_cndmask_b32 {v(vSt+4*i)}, {v(vSt+4*i)}, {v(vCn+i)}, {s(sQ0,2)}
        v_cmp_le_u32 vcc, {v(vQ16)}, {v(vCn+i)}
        s_mov_b64 exec, vcc
        global_store_dwordx4 {v(vG0+i)}, {v(vSt+4*i,4)}, {s(sRB,2)} {SCR}
        s_mov_b64 exec, -1
        """)
    stamp1(6)
    e(f"""
    s_waitcnt vmcnt(4)
    s_barrier
    """)
    stamp1(7)
    c("overflow count of this workgroup")
    e(f"""
    s_cmp_lg_u32 {s(sW)}, 8
    s_cbranch_scc1 k1_w15
    v_mov_b32 {v(t1)}, {K1_OC}
    ds_read_b32 {v(t2)}, {v(t1)}
    s_lshl_b32 {s(sT)}, s2, 2
    s_add_u32 {s(sT)}, {s(sT)}, {WS_OVFC}
    v_mov_b32 {v(t1)}, {s(sT)}
    s_mov_b64 exec, 1
    s_waitcnt lgkmcnt(0)
    global_store_dword {v(t1)}, {v(t2)}, s[32:33]
    k1_w15:
    s_cmp_lg_u32 {s(sW)}, 15
    s_cbranch_scc1 k1_fin
    s_cmp_gt_u32 s2, 128
    s_cbranch_scc1 k1_fin
    s_lshl_b32 {s(sT)}, s2, 10
    s_add_u32 {s(sT)}, {s(sT)}, {WS_FRAG}
    v_lshl_add_u32 {v(t1)}, {v(vLane)}, 4, {s(sT)}
    s_cmp_eq_u32 s2, 128
    s_cbranch_scc1 k1_cst
    v_lshl_or_b32 v32, {v(vFr+1)}, 16, {v(vFr)}
    v_lshl_or_b32 v33, {v(vFr+3)}, 16, {v(vFr+2)}
    v_lshl_or_b32 v34, {v(vFr+5)}, 16, {v(vFr+4)}
    v_lshl_or_b32 v35, {v(vFr+7)}, 16, {v(vFr+6)}
    global_store_dwordx4 {v(t1)}, v[32:35], s[32:33]
    s_branch k1_fin
    k1_cst:
    """)
    for m in range(8): e(f"v_lshlrev_b32 {v(vFr+m)}, 16, {v(vFr+m)}")
    for m in range(8): e(f"v_mul_f32 {v(vFr+m)}, {s(sL2E)}, {v(vFr+m)}")
    e(f"""
    v_cvt_pk_bf16_f32 {v(vFr)}, {v(vFr)}, {v(vFr+1)}
    v_cvt_pk_bf16_f32 {v(vFr+1)}, {v(vFr+2)}, {v(vFr+3)}
    v_lshl_add_u32 {v(t2)}, {v(vLane)}, 3, {s(sT)}
    global_store_dwordx4 {v(t1)}, {v(vFr+4,4)}, s[32:33]
    global_store_dwordx2 {v(t2)}, {v(vFr,2)}, s[32:33] offset:1024
    k1_fin:
    """)
    stamp1(8)
    if STAMP:
        e("s_waitcnt vmcnt(0)")
        stamp1(9)
        stamp1(10)
        stamp_out(0, 13, sW)
    e(f"""
    k1_end:
    s_endpgm
    """)

L_ND, L_HIST, L_DEG, L_OWN, L_OVM, L_WT = 0, 1024, 1280, 1792, 2304, 2368
L_C2 = 3072
L_E = 7168
L_LIST = 16128
L_X = 34048
L_Q = 59648
QS, HSS = 1040, 528
K2_LDS = L_Q + NPB*QS
L_W2 = 16384
L_HS = 81920
L_TR = L_HS + NPB*HSS
assert L_TR + 12*2048 <= K2_LDS <= 163840
NULLREC = 0x7fffff00

def dpp_scan(r):
    for sh in (1, 2, 4, 8):
        e("s_nop 1")
        e(f"v_add_u32_dpp {v(r)}, {v(r)}, {v(r)} row_shr:{sh} row_mask:0xf bank_mask:0xf bound_ctrl:0")
    e("s_nop 1")
    e(f"v_add_u32_dpp {v(r)}, {v(r)}, {v(r)} row_bcast:15 row_mask:0xa bank_mask:0xf")
    e("s_nop 1")
    e(f"v_add_u32_dpp {v(r)}, {v(r)}, {v(r)} row_bcast:31 row_mask:0xc bank_mask:0xf")

def gen_k2():
    e("k2_kernel:")
    sW, sNN, sT, sT2, sN4, sOff, sCnt = 3, 4, 5, 6, 7, 8, 9
    sX = 36; sL = 40; sPS = 44
    RB = 48
    sM = 48
    sSel = 64; sFB = 66
    sCl = 72; sMask = 74
    sOff0 = 76
    nodeS = [10, 11, 12, 13, 14, 15, 96]
    sSc = 98
    vLane, vL8, vL16 = 1, 2, 3
    e(f"""
    s_cmp_ge_u32 s2, 256
    s_cbranch_scc1 k2_end
    """)
    stamp2(0)
    e(f"""
    s_load_dwordx16 s[16:31], s[0:1], 0
    s_load_dwordx2 s[32:33], s[0:1], 80
    s_load_dwordx2 s[34:35], s[0:1], 64
    v_lshrrev_b32 v4, 6, v0
    v_and_b32 {v(vLane)}, 63, v0
    v_readfirstlane_b32 {s(sW)}, v4
    v_lshlrev_b32 v5, 2, v0
    v_mov_b32 v6, 0
    ds_write_b32 v5, v6 offset:{L_C2}
    v_and_b32 v7, 0x301, v0
    v_cmp_eq_u32 vcc, 0, v7
    v_lshlrev_b32 {v(vL16)}, 4, {v(vLane)}
    v_lshlrev_b32 {v(vL8)}, 3, {v(vLane)}
    s_cmp_ge_u32 {s(sW)}, 12
    s_cbranch_scc1 k2_noinit
    v_cndmask_b32 v6, 0, 63, vcc
    v_cndmask_b32 v7, 0, 64, vcc
    v_add_u32 v6, v6, v7
    ds_write_b32 v5, v6
    k2_noinit:
    s_cmp_eq_u32 s2, 255
    s_cselect_b32 {s(sNN)}, {N-255*NPB}, {NPB}
    s_mov_b32 {s(sL+2)}, {RS}
    s_mov_b32 {s(sL+3)}, 0x20000
    s_lshl_b32 {s(sX+2)}, {s(sNN)}, 8
    s_mov_b32 {s(sX+3)}, 0x20000
    s_mul_i32 {s(sT)}, s2, {RS}
    s_add_u32 {s(sT)}, {s(sT)}, {WS_REC}
    s_mul_i32 {s(sT2)}, s2, {NPB*256}
    s_cmp_ge_u32 {s(sW)}, 8
    s_cbranch_scc1 k2_gemm
    """)
    def srds():
        e(f"""
        s_waitcnt lgkmcnt(0)
        s_add_u32 {s(sL)}, s32, {s(sT)}
        s_addc_u32 {s(sL+1)}, s33, 0
        s_add_u32 {s(sX)}, s16, {s(sT2)}
        s_addc_u32 {s(sX+1)}, s17, 0
        """)
    def wb_loads(vt, vw):
        e(f"""
        v_add_u32 {v(vt)}, {WS_CONST}, {v(vL16)}
        v_add_u32 {v(vt+1)}, {WS_CONST + 1024}, {v(vL8)}
        global_load_dwordx4 {v(vB1,4)}, {v(vt)}, s[32:33]
        global_load_dwordx2 {v(vw,2)}, {v(vt+1)}, s[32:33]
        """)
    vI, vW, vEA, vSel, vRaw, vEad = 4, 6, 8, 10, 12, 13
    vB1 = 52
    vQA = 92
    vU, vTt, vP, vN, vD, vQ = 16, 24, 28, 44, 72, 100
    vLs = 44
    sW2, sM0 = 84, 86
    def consts():
        c("constants: identity rows and byte selectors for the 4x4x4 MFMA")
        t0 = 60
        e(f"""
        s_mov_b32 {s(sPS)}, s32
        s_mov_b32 {s(sPS+1)}, s33
        s_mov_b32 {s(sPS+2)}, {N*512}
        s_mov_b32 {s(sPS+3)}, 0x20000
        s_mov_b32 {s(sSc)}, {f32(-LOG2E)}
        s_mov_b32 {s(sSc+1)}, {f32(-LOG2E)}
        s_mov_b32 {s(sMask)}, 0xffffff00
        s_mov_b32 {s(sMask+1)}, 0xffffff00
        s_mov_b32 s82, 0x21800000
        s_mov_b32 s83, 0x21800000
        s_lshl_b32 {s(sT2)}, {s(sW)}, 12
        s_add_u32 {s(sM0)}, {s(sT2)}, {L_W2}
        s_add_u32 {s(sT2)}, {s(sT2)}, {WS_FRAG + 65536}
        s_add_u32 {s(sW2)}, s32, {s(sT2)}
        s_addc_u32 {s(sW2+1)}, s33, 0
        v_and_b32 {v(t0)}, 1, {v(vLane)}
        v_cmp_eq_u32 vcc, 0, {v(t0)}
        v_mov_b32 {v(t0+1)}, 0x01000c0c
        v_mov_b32 {v(t0+2)}, 0x0c0c0100
        v_cndmask_b32 {v(t0+1)}, {v(t0+1)}, {v(t0+2)}, vcc
        v_and_b32 {v(t0)}, 2, {v(vLane)}
        v_cmp_eq_u32 vcc, 0, {v(t0)}
        v_mov_b32 {v(t0+2)}, 0x0c0c0c0c
        v_mov_b32 {v(t0+3)}, 0x3f80
        v_cndmask_b32 {v(vSel)}, {v(t0+2)}, {v(t0+1)}, vcc
        v_cndmask_b32 {v(vSel+1)}, {v(t0+1)}, {v(t0+2)}, vcc
        v_perm_b32 {v(vI)}, {v(t0+3)}, {v(t0+3)}, {v(vSel)}
        v_perm_b32 {v(vI+1)}, {v(t0+3)}, {v(t0+3)}, {v(vSel+1)}
        """)
    def qaddr():
        for i in range(7):
            e(f"""
            s_min_u32 {s(sT)}, {s(nodeS[i])}, {NPB-1}
            s_mul_i32 {s(sT)}, {s(sT)}, {QS}
            v_add_u32 {v(vQA+i)}, {s(sT)}, {v(vL16)}
            """)
        e(f"""
        v_add_u32 {v(vQA+7)}, {s(sOff)}, {v(vL8)}
        v_lshrrev_b32 {v(vEad)}, 2, {v(vLane)}
        s_lshr_b32 {s(sT)}, {s(sOff)}, 1
        v_lshl_add_u32 {v(vEad)}, {v(vEad)}, 1, {s(sT)}
        """)
    def offsets2(vT, vN4):
        c("sort wave w: list offsets per (phase, slot) of lists w and w+8; base = padded sum of the lower lists' degrees")
        e(f"""
        v_and_b32 {v(vT)}, 7, {v(vLane)}
        s_lshl_b32 {s(sT)}, {s(sW)}, 6
        v_lshl_add_u32 {v(vT+2)}, {v(vT)}, 3, {s(sT)}
        ds_read_b32 {v(vT+1)}, {v(vT+2)} offset:{L_ND}
        ds_read_b32 {v(vT+2)}, {v(vT+2)} offset:{L_ND+512}
        ds_read_b128 {v(vN4,4)}, {v(vL16)} offset:{L_ND}
        v_lshrrev_b32 {v(vT+4)}, 3, {v(vLane)}
        v_lshlrev_b32 {v(vT+4)}, 2, {v(vT+4)}
        v_lshlrev_b32 {v(vT)}, 18, {v(vT)}
        s_lshl_b32 {s(sT2)}, {s(sW)}, 2
        s_add_u32 s68, {s(sT2)}, 31
        s_sub_u32 {s(sT2)}, {s(sT2)}, 1
        s_and_b32 {s(sT2)}, {s(sT2)}, 63
        s_waitcnt lgkmcnt(1)
        v_lshl_add_u32 {v(vT+3)}, {v(vT+1)}, 5, {v(vT+4)}
        v_lshl_add_u32 {v(vT+4)}, {v(vT+2)}, 5, {v(vT+4)}
        ds_read_b32 {v(vT+5)}, {v(vT+3)} offset:{L_C2}
        ds_read_b32 {v(vT+6)}, {v(vT+4)} offset:{L_C2}
        s_waitcnt lgkmcnt(2)
        v_add_u32 {v(vT+8)}, {v(vN4+1)}, {v(vN4+3)}
        v_cmp_ne_u32 vcc, 127, {v(vT+1)}
        v_cmp_ne_u32 s[70:71], {v(vT+2)}, {v(vT+9)}
        """)
        steps = [f"row_shr:{sh} row_mask:0xf bank_mask:0xf bound_ctrl:0" for sh in (1, 2, 4, 8)] + ["row_bcast:15 row_mask:0xa bank_mask:0xf", "row_bcast:31 row_mask:0xc bank_mask:0xf"]
        Y, X = vT+8, vT+7
        for k, st in enumerate(steps):
            e(f"v_add_u32_dpp {v(Y)}, {v(Y)}, {v(Y)} {st}")
            e(f"v_readlane_b32 {s(nodeS[k])}, {v(vT+1)}, {k}")
            if k < 5: e("s_nop 0")
        e(f"""
        v_readlane_b32 {s(nodeS[6])}, {v(vT+1)}, 6
        v_readlane_b32 {s(sOff)}, {v(Y)}, {s(sT2)}
        v_readlane_b32 s69, {v(Y)}, s68
        s_waitcnt lgkmcnt(0)
        v_lshl_or_b32 {v(X)}, {v(vT+6)}, 16, {v(vT+5)}
        v_mov_b32 {v(vT+5)}, {v(X)}
        s_cmp_eq_u32 {s(sW)}, 0
        """)
        fill = [f"s_cselect_b32 {s(sOff)}, 0, {s(sOff)}", f"s_lshl_b32 {s(sT)}, {s(sW)}, 7",
                f"s_add_u32 {s(sT)}, {s(sT)}, 63", f"s_add_u32 {s(sOff)}, {s(sOff)}, {s(sT)}",
                f"s_andn2_b32 {s(sOff)}, {s(sOff)}, 63", f"s_add_u32 s69, s69, {s(sT)}",
                f"s_add_u32 s69, s69, 1024", f"s_andn2_b32 s69, s69, 63",
                f"s_lshl_b32 {s(sT)}, {s(sW)}, 3", "s_nop 0", "s_nop 0", "s_nop 0"]
        for k, st in enumerate(steps):
            e(f"v_add_u32_dpp {v(X)}, {v(X)}, {v(X)} {st}")
            e(fill[2*k]); e(fill[2*k+1])
        e(f"""
        v_readlane_b32 {s(sN4)}, {v(X)}, 63
        v_sub_u32 {v(X)}, {v(X)}, {v(vT+5)}
        v_and_b32 {v(vT+5)}, 0xffff, {v(X)}
        v_lshrrev_b32 {v(vT+6)}, 16, {v(X)}
        v_add3_u32 {v(vT+5)}, {v(vT+5)}, {s(sOff)}, {v(vT)}
        v_add3_u32 {v(vT+6)}, {v(vT+6)}, s69, {v(vT)}
        s_mov_b64 exec, vcc
        ds_write_b32 {v(vT+3)}, {v(vT+5)} offset:{L_C2}
        s_mov_b64 exec, s[70:71]
        ds_write_b32 {v(vT+4)}, {v(vT+6)} offset:{L_C2}
        s_lshr_b32 s68, {s(sN4)}, 16
        s_and_b32 {s(sN4)}, {s(sN4)}, 0xffff
        s_mov_b64 exec, 0xffff
        s_add_u32 {s(sT2)}, {s(sOff)}, {s(sN4)}
        v_lshl_add_u32 {v(vT)}, {v(vLane)}, 2, {s(sT2)}
        s_add_u32 {s(sT2)}, s69, s68
        v_lshl_add_u32 {v(vT+1)}, {v(vLane)}, 2, {s(sT2)}
        v_mov_b32 {v(vT+2)}, {NULLREC}
        v_mov_b32 {v(vT+3)}, {s(sT)}
        v_mov_b32 {v(vT+4)}, s69
        v_mov_b32 {v(vT+5)}, s68
        ds_write_b32 {v(vT)}, {v(vT+2)} offset:{L_LIST}
        ds_write_b32 {v(vT+1)}, {v(vT+2)} offset:{L_LIST}
        ds_write_b64 {v(vT+3)}, {v(vT+4,2)} offset:{L_WT}
        s_mov_b64 exec, -1
        s_waitcnt lgkmcnt(0)
        """)
    vRec, vHd, vRk, vAd, vT = 16, 32, 36, 44, 100
    c("waves 0..7: second-level sort of the bin's records")
    e(f"v_lshl_add_u32 v4, v4, 12, {v(vL16)}")
    srds()
    wb_loads(vT, vW)
    e("s_barrier")
    for j in range(4):
        e(f"buffer_load_dwordx4 {v(vRec+4*j,4)}, v4, {s(sL,4)}, 0 offen offset:{1024*j}")
    consts()
    e("s_barrier")
    stamp2(1)
    e(f"""
    v_and_b32 {v(vT)}, 0xf0, {v(vL16)}
    v_add_u32 {v(vT+1)}, 8, {v(vT)}
    v_cmp_ne_u32 {s(sSel,2)}, 0, {v(vT)}
    v_mov_b32 {v(vT+2)}, 4
    v_mov_b32 {v(vT+9)}, 127
    """)
    for j in range(4):
        e(f"""
        s_waitcnt vmcnt({3-j})
        v_mov_b32_dpp {v(vHd+j)}, {v(vRec+4*j)} row_newbcast:0 row_mask:0xf bank_mask:0xf
        v_and_b32 {v(vAd+2*j)}, 0xffff, {v(vRec+4*j+1)}
        v_and_b32 {v(vAd+2*j+1)}, 0xffff, {v(vRec+4*j+3)}
        v_cmp_le_u32 {s(sM+4*j,2)}, {v(vT)}, {v(vHd+j)}
        v_cmp_le_u32 {s(sM+4*j+2,2)}, {v(vT+1)}, {v(vHd+j)}
        s_and_b64 exec, {s(sM+4*j,2)}, {s(sSel,2)}
        s_mov_b64 {s(sM+4*j,2)}, exec
        ds_add_rtn_u32 {v(vRk+2*j)}, {v(vAd+2*j)}, {v(vT+2)} offset:{L_C2}
        s_mov_b64 exec, {s(sM+4*j+2,2)}
        ds_add_rtn_u32 {v(vRk+2*j+1)}, {v(vAd+2*j+1)}, {v(vT+2)} offset:{L_C2}
        s_mov_b64 exec, -1
        """)
    stamp2(2)
    e(f"""
    v_max3_u32 {v(vT+3)}, {v(vHd)}, {v(vHd+1)}, {v(vHd+2)}
    v_max_u32 {v(vT+3)}, {v(vT+3)}, {v(vHd+3)}
    v_cmp_lt_u32 vcc, 248, {v(vT+3)}
    s_cbranch_vccz k2_noovf
    """)
    c("rare: remember which chunks overflowed (bit c of OVM)")
    for j in range(4):
        e(f"""
        v_lshrrev_b32 {v(vT+3)}, 4, {v(vLane)}
        s_lshl_b32 {s(sT)}, {s(sW)}, 4
        s_add_u32 {s(sT)}, {s(sT)}, {4*j}
        v_add_u32 {v(vT+3)}, {s(sT)}, {v(vT+3)}
        v_lshlrev_b32 {v(vT+4)}, {v(vT+3)}, 1
        v_lshrrev_b32 {v(vT+3)}, 5, {v(vT+3)}
        v_lshlrev_b32 {v(vT+3)}, 2, {v(vT+3)}
        v_cmp_lt_u32 vcc, 248, {v(vHd+j)}
        s_mov_b64 exec, vcc
        ds_or_b32 {v(vT+3)}, {v(vT+4)} offset:{L_OVM}
        s_mov_b64 exec, -1
        """)
    e(f"""
    k2_noovf:
    s_waitcnt lgkmcnt(0)
    s_barrier
    """)
    stamp2(3)
    e(f"""
    s_cmp_lg_u32 {s(sW)}, 0
    s_cbranch_scc1 k2_noassign
    """)
    c("wave 0: rank the nodes by degree, deal them to (wave, slot) in snake order")
    a = 64; d = 80
    e(f"""
    v_lshlrev_b32 {v(vT)}, 5, {v(vLane)}
    ds_read_b128 {v(a,4)}, {v(vT)} offset:{L_C2}
    ds_read_b128 {v(a+4,4)}, {v(vT)} offset:{L_C2+16}
    ds_read_b128 {v(a+8,4)}, {v(vT)} offset:{L_C2+2048}
    ds_read_b128 {v(a+12,4)}, {v(vT)} offset:{L_C2+2064}
    v_add_u32 {v(vT+1)}, 64, {v(vLane)}
    v_cmp_gt_u32 s[68:69], {s(sNN)}, {v(vLane)}
    v_cmp_gt_u32 s[70:71], {s(sNN)}, {v(vT+1)}
    v_mov_b32 {v(vT+2)}, 1
    v_lshlrev_b32 {v(vT+3)}, 2, {v(vLane)}
    """)
    for i in range(2):
        b = a + 8*i
        e(f"""
        s_waitcnt lgkmcnt({2 if i == 0 else 1})
        v_add3_u32 {v(b)}, {v(b)}, {v(b+1)}, {v(b+2)}
        v_add3_u32 {v(b+3)}, {v(b+3)}, {v(b+4)}, {v(b+5)}
        v_add3_u32 {v(b)}, {v(b)}, {v(b+6)}, {v(b+7)}
        v_add_u32 {v(d+2*i+1)}, {v(b)}, {v(b+3)}
        v_min_u32 {v(d+4+i)}, 252, {v(d+2*i+1)}
        v_sub_u32 {v(d+4+i)}, 252, {v(d+4+i)}
        """)
        if i == 0:
            e(f"""
            s_mov_b64 exec, s[68:69]
            ds_add_rtn_u32 {v(d+6)}, {v(d+4)}, {v(vT+2)} offset:{L_HIST}
            s_mov_b64 exec, -1
            """)
        else:
            e(f"""
            s_mov_b64 exec, s[70:71]
            ds_add_rtn_u32 {v(d+7)}, {v(d+5)}, {v(vT+2)} offset:{L_HIST}
            s_mov_b64 exec, -1
            """)
    e(f"""
    ds_read_b32 {v(d+8)}, {v(vT+3)} offset:{L_HIST}
    v_mov_b32 {v(d)}, {v(vLane)}
    v_mov_b32 {v(d+2)}, {v(vT+1)}
    v_lshrrev_b32 {v(a)}, 2, {v(d+1)}
    v_lshrrev_b32 {v(a+1)}, 2, {v(d+3)}
    ds_write_b32 {v(vT+3)}, {v(a)} offset:{L_DEG}
    ds_write_b32 {v(vT+3)}, {v(a+1)} offset:{L_DEG+256}
    s_waitcnt lgkmcnt(2)
    v_mov_b32 {v(d+9)}, {v(d+8)}
    """)
    dpp_scan(d+8)
    e(f"""
    v_sub_u32 {v(d+8)}, {v(d+8)}, {v(d+9)}
    ds_bpermute_b32 {v(a+2)}, {v(d+4)}, {v(d+8)}
    ds_bpermute_b32 {v(a+3)}, {v(d+5)}, {v(d+8)}
    s_waitcnt lgkmcnt(0)
    """)
    for i in range(2):
        e(f"""
        v_add_u32 {v(a+2+i)}, {v(a+2+i)}, {v(d+6+i)}
        v_bfe_i32 {v(a+4+i)}, {v(a+2+i)}, 4, 1
        v_xor_b32 {v(a+4+i)}, {v(a+4+i)}, {v(a+2+i)}
        v_and_b32 {v(a+4+i)}, 15, {v(a+4+i)}
        v_lshrrev_b32 {v(a+2+i)}, 4, {v(a+2+i)}
        v_lshl_add_u32 {v(a+2+i)}, {v(a+4+i)}, 3, {v(a+2+i)}
        v_lshlrev_b32 {v(a+4+i)}, 3, {v(a+2+i)}
        s_mov_b64 exec, s[{68+2*i}:{69+2*i}]
        ds_write_b64 {v(a+4+i)}, {v(d+2*i,2)} offset:{L_ND}
        ds_write_b32 {v(vT+3)}, {v(a+2+i)} offset:{L_OWN+256*i}
        s_mov_b64 exec, -1
        """)
    e(f"""
    s_waitcnt lgkmcnt(0)
    k2_noassign:
    """)
    stamp2(4)
    e("s_barrier")
    stamp2(5)
    offsets2(vT, 64)
    e("s_barrier")
    stamp2(6)
    c("scatter the records into the per-wave lists in LDS")
    for i in range(8):
        e(f"s_mov_b64 exec, {s(sM+2*i,2)}")
        e(f"ds_read_b32 {v(vAd+i)}, {v(vAd+i)} offset:{L_C2}")
    e("s_mov_b64 exec, -1")
    qaddr()
    e("s_waitcnt lgkmcnt(0)")
    for i in range(8):
        e(f"""
        v_add_u32_sdwa {v(vRk+i)}, {v(vAd+i)}, {v(vRk+i)} dst_sel:DWORD dst_unused:UNUSED_PAD src0_sel:WORD_0 src1_sel:DWORD
        v_or_b32_sdwa {v(vRec+2*i)}, {v(vRec+2*i)}, {v(vAd+i)} dst_sel:DWORD dst_unused:UNUSED_PAD src0_sel:DWORD src1_sel:WORD_1
        v_lshrrev_b32 {v(vAd+i)}, 1, {v(vRk+i)}
        """)
    for i in range(8):
        e(f"""
        s_mov_b64 exec, {s(sM+2*i,2)}
        ds_write_b32 {v(vRk+i)}, {v(vRec+2*i)} offset:{L_LIST}
        ds_write_b16_d16_hi {v(vAd+i)}, {v(vRec+2*i+1)} offset:{L_E}
        """)
    e(f"""
    s_mov_b64 exec, -1
    s_waitcnt lgkmcnt(0)
    """)
    stamp2(7)
    e("s_barrier")
    stamp2(8)
    e("s_branch k2_join")
    vBA, vQW = 4, 6
    vBf, vAf, vAc = 8, 32, 64
    vGT = 8
    c("waves 8..15: Q = x[bin] @ w1[128:256] -> LDS (f32)")
    e(f"""
    k2_gemm:
    v_lshrrev_b32 {v(vGT)}, 4, {v(vLane)}
    v_xor_b32 {v(vGT)}, {v(vGT)}, {v(vLane)}
    v_and_b32 {v(vGT)}, 15, {v(vGT)}
    v_and_b32 {v(vGT+1)}, 48, {v(vLane)}
    v_or_b32 {v(vGT)}, {v(vGT)}, {v(vGT+1)}
    v_lshlrev_b32 {v(vGT)}, 4, {v(vGT)}
    v_xor_b32 {v(vGT+1)}, 64, {v(vGT)}
    v_xor_b32 {v(vGT+2)}, 0x80, {v(vGT)}
    v_xor_b32 {v(vGT+3)}, 0xc0, {v(vGT)}
    """)
    srds()
    e(f"""
    s_and_b32 {s(sT)}, {s(sW)}, 7
    s_lshl_b32 {s(sT2)}, {s(sT)}, 12
    s_add_u32 m0, {s(sT2)}, {L_X}
    s_cmp_ge_u32 {s(sT)}, 7
    s_cbranch_scc1 k2_nox
    buffer_load_dwordx4 {v(vGT)}, {s(sX,4)}, {s(sT2)} offen lds
    s_cmp_ge_u32 {s(sT)}, 6
    s_cbranch_scc1 k2_nox
    buffer_load_dwordx4 {v(vGT+1)}, {s(sX,4)}, {s(sT2)} offen offset:1024 lds
    buffer_load_dwordx4 {v(vGT+2)}, {s(sX,4)}, {s(sT2)} offen offset:2048 lds
    buffer_load_dwordx4 {v(vGT+3)}, {s(sX,4)}, {s(sT2)} offen offset:3072 lds
    k2_nox:
    s_lshl_b32 {s(sT2)}, {s(sT)}, 13
    s_add_u32 {s(sT2)}, {s(sT2)}, {WS_FRAG + 4096}
    s_add_u32 {s(sFB)}, s32, {s(sT2)}
    s_addc_u32 {s(sFB+1)}, s33, 0
    s_barrier
    """)
    NF0 = int(opt("nf0", 3))
    for st in range(NF0):
        e(f"global_load_dwordx4 {v(vAf+4*st,4)}, {v(vL16)}, {s(sFB,2)} offset:{(st-4)*1024}")
    e(f"""
    v_and_b32 {v(vGT)}, 31, {v(vLane)}
    v_lshrrev_b32 {v(vGT+1)}, 5, {v(vLane)}
    v_mul_u32_u24 {v(vQW)}, {QS}, {v(vGT)}
    v_lshl_add_u32 {v(vQW)}, {v(vGT+1)}, 6, {v(vQW)}
    s_lshl_b32 {s(sT2)}, {s(sT)}, 7
    s_add_u32 {s(sT2)}, {s(sT2)}, {L_Q}
    v_add_u32 {v(vQW)}, {s(sT2)}, {v(vQW)}
    v_add_u32 {v(vQW+1)}, {64*QS}, {v(vQW)}
    v_cmp_gt_u32 {s(sSel,2)}, 2, {v(vGT)}
    v_xor_b32 {v(vGT+1)}, {v(vGT+1)}, {v(vLane)}
    v_and_b32 {v(vGT+1)}, 15, {v(vGT+1)}
    v_lshlrev_b32 {v(vGT+1)}, 4, {v(vGT+1)}
    v_lshl_add_u32 {v(vBA)}, {v(vGT)}, 8, {v(vGT+1)}
    v_mov_b32 {v(vBA+1)}, {v(vBA)}
    s_waitcnt vmcnt({NF0})
    s_barrier
    """)
    stamp2(1)
    AH = 5
    def bread(m):
        st, tl = m >> 2, m & 3
        if tl == 0 and st > 0: e(f"v_xor_b32 {v(vBA+1)}, {st<<5}, {v(vBA)}")
        e(f"ds_read_b128 {v(vBf+4*(m % 6),4)}, {v(vBA+1)} offset:{L_X+8192*tl}")
    for m in range(AH): bread(m)
    for st in range(NF0, 8):
        e(f"global_load_dwordx4 {v(vAf+4*st,4)}, {v(vL16)}, {s(sFB,2)} offset:{(st-4)*1024}")
    MB2 = int(opt("mb2", 15))
    for m in range(32):
        st, tl = m >> 2, m & 3
        if m + AH < 32: bread(m + AH)
        lg = min(AH, 31 - m)
        if tl == 0: e(f"s_waitcnt vmcnt({7 - st + (2 if st >= 6 else 0)}) lgkmcnt({lg})")
        else: e(f"s_waitcnt lgkmcnt({lg})")
        acc = vAc + 16*tl
        e(f"v_mfma_f32_32x32x16_bf16 {v(acc,16)}, {v(vAf+4*st,4)}, {v(vBf+4*(m % 6),4)}, " + ("0" if st == 0 else v(acc,16)))
        if m == MB2:
            stamp2(2); e("s_barrier"); stamp2(3)
        if m == 23:
            wb_loads(vAf, 48)
    stamp2(4); e("s_barrier"); stamp2(5)
    e("s_nop 5")
    for tl in range(4):
        acc = vAc + 16*tl
        if tl == 3: e(f"s_mov_b64 exec, {s(sSel,2)}")
        for r in range(4):
            e(f"ds_write_b128 {v(vQW+(tl>>1))}, {v(acc+4*r,4)} offset:{(tl&1)*32*QS+16*r}")
        if tl == 1:
            e("s_barrier"); stamp2(6)
    c("this wave's nodes, list offset and length")
    e(f"""
    s_mov_b64 exec, -1
    s_lshl_b32 {s(sT2)}, {s(sW)}, 6
    v_add_u32 {v(vAf)}, {s(sT2)}, {v(vL8)}
    s_lshl_b32 {s(sT2)}, {s(sT)}, 3
    v_mov_b32 {v(vAf+1)}, {s(sT2)}
    ds_read_b32 {v(vAf)}, {v(vAf)} offset:{L_ND}
    ds_read_b64 {v(vAf+2,2)}, {v(vAf+1)} offset:{L_WT}
    """)
    consts()
    e("s_waitcnt vmcnt(0) lgkmcnt(0)")
    e(f"v_mov_b64 {v(vW,2)}, v[48:49]")
    for i in range(7):
        e(f"v_readlane_b32 {s(nodeS[i])}, {v(vAf)}, {i}")
    e(f"v_readfirstlane_b32 {s(sOff)}, {v(vAf+2)}")
    e(f"v_readfirstlane_b32 {s(sN4)}, {v(vAf+3)}")
    qaddr()
    stamp2(7)
    e("s_barrier")
    stamp2(8)
    e("k2_join:")
    e(f"""
    s_setprio 3
    ds_read_b64 {v(vLs,2)}, {v(vQA+7)} offset:{L_LIST}
    ds_read_u16 {v(vTt)}, {v(vEad)} offset:{L_E}
    ds_read_u16 {v(vRaw)}, {v(vEad)} offset:{L_E+24}
    """)
    for i in range(7):
        e(f"ds_read_b128 {v(vQ+4*i,4)}, {v(vQA+i)} offset:{L_Q}")
    e(f"""
    s_waitcnt lgkmcnt(9)
    buffer_store_dwordx2 {v(vLs,2)}, {v(vQA+7)}, {s(sL,4)}, 0 offen
    """)
    for j in range(8):
        e(f"v_readlane_b32 {s(RB+j)}, {v(vLs+(j&1))}, {j>>1}")
    for j in range(0, 8, 2):
        e(f"s_and_b64 {s(88+j,2)}, {s(RB+j,2)}, {s(sMask,2)}")
    for j in range(8):
        e(f"buffer_load_dwordx2 {v(vP+2*j,2)}, {v(vL8)}, {s(sPS,4)}, {s(88+j)} offen")
    c("lists longer than 112 records: copy the rest")
    e(f"""
    s_add_u32 {s(sT)}, {s(sN4)}, 64
    s_cmp_le_u32 {s(sT)}, 512
    s_cbranch_scc1 k2_copied
    k2_copy:
    v_add_u32 {v(vQA+7)}, 512, {v(vQA+7)}
    ds_read_b64 {v(vLs+4,2)}, {v(vQA+7)} offset:{L_LIST}
    s_sub_u32 {s(sT)}, {s(sT)}, 512
    s_waitcnt lgkmcnt(0)
    buffer_store_dwordx2 {v(vLs+4,2)}, {v(vQA+7)}, {s(sL,4)}, 0 offen
    s_cmp_gt_u32 {s(sT)}, 512
    s_cbranch_scc1 k2_copy
    k2_copied:
    """)
    for j in range(8, 24):
        e(f"v_readlane_b32 {s(RB+j)}, {v(vLs+(j&1))}, {j>>1}")
    e(f"""
    s_waitcnt lgkmcnt(0)
    s_barrier
    """)
    stamp2(9)
    e(f"""
    v_perm_b32 {v(vEA)}, {v(vTt)}, {v(vTt)}, {v(vSel)}
    v_perm_b32 {v(vEA+1)}, {v(vTt)}, {v(vTt)}, {v(vSel+1)}
    """)
    for i in range(7):
        e(f"v_pk_fma_f32 {v(vQ+4*i,2)}, {v(vQ+4*i,2)}, {s(sSc,2)}, {v(vB1,2)}")
        e(f"v_pk_fma_f32 {v(vQ+4*i+2,2)}, {v(vQ+4*i+2,2)}, {s(sSc,2)}, {v(vB1+2,2)}")
    for i in range(0, 28, 2):
        e(f"v_mov_b64 {v(vN+i,2)}, 0")
        e(f"v_mov_b64 {v(vD+i,2)}, s[82:83]")
    e(f"""
    s_mov_b32 {s(sOff0)}, {s(sOff)}
    s_add_u32 {s(sOff)}, {s(sOff)}, 96
    s_lshr_b32 {s(sCnt)}, {s(sN4)}, 2
    s_and_b64 {s(sCl,2)}, {s(RB+8,2)}, {s(sMask,2)}
    s_set_gpr_idx_on {s(RB)}, gpr_idx(SRC2)
    v_mfma_f32_4x4x4_16b_bf16 {v(vU,4)}, {v(vEA,2)}, {v(vW,2)}, {v(vQ,4)} cbsz:4 abid:0
    s_set_gpr_idx_off
    s_waitcnt vmcnt(7)
    v_mfma_f32_4x4x4_16b_bf16 {v(vU,4)}, {v(vI,2)}, {v(vP,2)}, {v(vU,4)}
    buffer_load_dwordx2 {v(vP,2)}, {v(vL8)}, {s(sPS,4)}, {s(sCl)} offen
    s_setprio 2
    s_waitcnt vmcnt(7)
    """)
    stamp2(10)
    e(f"""
    s_sub_u32 {s(sCnt)}, {s(sCnt)}, 8
    s_cbranch_scc1 k2_tail0
    """)
    PRIO = "--noprio" not in sys.argv
    def R(i): return RB + (i % 24)
    def edge(i, tail):
        uC, uN = vU + 4*(i & 1), vU + 4*((i+1) & 1)
        pb = vP + 2*((i+1) % 8)
        e(f"""
        s_set_gpr_idx_on {s(R(i+1))}, gpr_idx(SRC2)
        v_mfma_f32_4x4x4_16b_bf16 {v(uN,4)}, {v(vEA,2)}, {v(vW,2)}, {v(vQ,4)} cbsz:4 abid:{(i+1) % 12}
        v_exp_f32 {v(vTt)}, {v(uC)}
        v_exp_f32 {v(vTt+1)}, {v(uC+1)}
        s_set_gpr_idx_off
        v_mfma_f32_4x4x4_16b_bf16 {v(uN,4)}, {v(vI,2)}, {v(pb,2)}, {v(uN,4)}
        v_exp_f32 {v(vTt+2)}, {v(uC+2)}
        v_exp_f32 {v(vTt+3)}, {v(uC+3)}
        """)
        if i % 12 == 10:
            e(f"v_perm_b32 {v(vEA)}, {v(vRaw)}, {v(vRaw)}, {v(vSel)}")
            e(f"v_perm_b32 {v(vEA+1)}, {v(vRaw)}, {v(vRaw)}, {v(vSel+1)}")
        if i == 14 and not tail:
            e(f"v_add_u32 {v(vEad)}, 48, {v(vEad)}")
        if not tail and "--nogather" not in sys.argv:
            e(f"buffer_load_dwordx2 {v(pb,2)}, {v(vL8)}, {s(sPS,4)}, {s(sCl + ((i+9) & 1))} offen")
        e(f"s_set_gpr_idx_on {s(R(i))}, gpr_idx(SRC0,SRC2,DST)")
        for h in range(2): e(f"v_pk_fma_f32 {v(vN+2*h,2)}, {v(vN+2*h,2)}, {v(vTt+2*h,2)}, {v(vN+2*h,2)}")
        for h in range(2): e(f"v_pk_fma_f32 {v(vN+2*h,2)}, {v(vD+2*h,2)}, {v(uC+2*h,2)}, {v(vN+2*h,2)}")
        for h in range(2): e(f"v_pk_fma_f32 {v(vD+2*h,2)}, {v(vD+2*h,2)}, {v(vTt+2*h,2)}, {v(vD+2*h,2)}")
        k = i % 8
        vm = 7 if not tail else 10 - k
        if k == 5: e(f"s_waitcnt vmcnt({vm}) lgkmcnt(0)")
        else: e(f"s_waitcnt vmcnt({vm})")
        if tail: return
        if i % 2 == 0:
            e(f"s_and_b64 {s(sCl,2)}, {s(R(i+10),2)}, {s(sMask,2)}")
        if k == 3 and PRIO:
            b = i // 8
            e(f"""
            s_cmp_lt_u32 {s(sCl)}, {9390*512}
            s_cbranch_scc1 k2_pr{b}
            s_setprio 1
            s_cmp_lt_u32 {s(sCl)}, {2*9390*512}
            s_cbranch_scc1 k2_pr{b}
            s_setprio 0
            k2_pr{b}:
            """)
        if k == 7:
            e(f"""
            s_buffer_load_dwordx8 {s(R(i-7),8)}, {s(sL,4)}, {s(sOff)}
            s_add_u32 {s(sOff)}, {s(sOff)}, 32
            """)
            if i == 15: e(f"ds_read_u16 {v(vRaw)}, {v(vEad)} offset:{L_E}")
            if i == 23: e(f"ds_read_u16 {v(vRaw)}, {v(vEad)} offset:{L_E+24}")
            e(f"s_sub_u32 {s(sCnt)}, {s(sCnt)}, 8")
            if i < 23: e(f"s_cbranch_scc1 k2_tail{(i+1)//8}")
            else: e("s_cbranch_scc0 k2_loop")
    e("k2_loop:")
    for i in range(24):
        edge(i, False)
    for b in range(3):
        e(f"k2_tail{b}:")
        e(f"""
        s_set_gpr_idx_off
        s_mov_b32 m0, {s(sM0)}
        s_add_u32 {s(sCnt)}, {s(sCnt)}, 8
        """)
        for j in range(4):
            e(f"global_load_lds_dwordx4 {v(vL16)}, {s(sW2,2)} offset:{1024*j}")
        for k in range(7):
            e(f"""
            s_sub_u32 {s(sCnt)}, {s(sCnt)}, 1
            s_cbranch_scc1 k2_loopdone
            """)
            edge(8*b + k, True)
        if b < 2: e("s_branch k2_loopdone")
    e(f"""
    k2_loopdone:
    s_set_gpr_idx_off
    s_setprio 0
    """)
    stamp2(11)
    c("sums = N / D ; z = sum N*D is inf / nan when a product ran out of range")
    e(f"""
    v_mov_b32 {v(vU)}, 0
    ds_read_b128 {v(vTt,4)}, {v(vU)} offset:{L_OVM}
    v_pk_mul_f32 {v(vU+2,2)}, {v(vN,2)}, {v(vD,2)}
    """)
    for i in range(2, 28, 2):
        e(f"v_pk_fma_f32 {v(vU+2,2)}, {v(vN+i,2)}, {v(vD+i,2)}, {v(vU+2,2)}")
    for i in range(28):
        e(f"v_rcp_f32 {v(vD+i)}, {v(vD+i)}")
    e(f"""
    v_add_f32 {v(vU+2)}, {v(vU+2)}, {v(vU+3)}
    v_mov_b32 {v(vU+3)}, 0x207
    v_cmp_class_f32 s[80:81], {v(vU+2)}, {v(vU+3)}
    """)
    for i in range(0, 28, 2):
        e(f"v_pk_mul_f32 {v(vN+i,2)}, {v(vN+i,2)}, {v(vD+i,2)}")
    def safe_edge(sRec, sClean):
        e(f"""
        s_and_b32 {s(sClean)}, {s(sRec)}, 0xffffff00
        buffer_load_dwordx2 {v(vP,2)}, {v(vL8)}, {s(sPS,4)}, {s(sClean)} offen
        s_waitcnt lgkmcnt(0)
        v_perm_b32 {v(vEA)}, {v(vRaw)}, {v(vRaw)}, {v(vSel)}
        v_perm_b32 {v(vEA+1)}, {v(vRaw)}, {v(vRaw)}, {v(vSel+1)}
        s_set_gpr_idx_on {s(sRec)}, gpr_idx(SRC2)
        s_nop 1
        v_mfma_f32_4x4x4_16b_bf16 {v(vU,4)}, {v(vEA,2)}, {v(vW,2)}, {v(vQ,4)}
        s_set_gpr_idx_off
        s_waitcnt vmcnt(0)
        s_nop 1
        v_mfma_f32_4x4x4_16b_bf16 {v(vU,4)}, {v(vI,2)}, {v(vP,2)}, {v(vU,4)}
        s_nop 7
        """)
        for r in range(4): e(f"v_exp_f32 {v(vU+4+r)}, {v(vU+r)}")
        e("s_nop 1")
        for r in range(4): e(f"v_add_f32 {v(vU+4+r)}, 1.0, {v(vU+4+r)}")
        for r in range(4): e(f"v_rcp_f32 {v(vU+4+r)}, {v(vU+4+r)}")
        e(f"""
        s_set_gpr_idx_on {s(sRec)}, gpr_idx(SRC2,DST)
        v_pk_fma_f32 {v(vN,2)}, {v(vU,2)}, {v(vU+4,2)}, {v(vN,2)}
        v_pk_fma_f32 {v(vN+2,2)}, {v(vU+2,2)}, {v(vU+6,2)}, {v(vN+2,2)}
        s_set_gpr_idx_off
        """)
    e(f"""
    s_waitcnt vmcnt(0) lgkmcnt(0)
    v_or_b32 {v(vU+1)}, {v(vTt)}, {v(vTt+1)}
    v_or3_b32 {v(vU+1)}, {v(vU+1)}, {v(vTt+2)}, {v(vTt+3)}
    v_cmp_ne_u32 vcc, 0, {v(vU+1)}
    s_or_b64 vcc, vcc, s[80:81]
    s_cbranch_scc0 k2_epi
    s_cmp_eq_u64 s[80:81], 0
    s_cbranch_scc1 k2_ovf
    """)
    c("rare: redo the list edge by edge with one division per edge")
    for i in range(0, 28, 2):
        e(f"v_mov_b64 {v(vN+i,2)}, 0")
    e(f"""
    s_add_u32 s57, {s(sOff0)}, {s(sN4)}
    k2_redo:
    s_cmp_ge_u32 {s(sOff0)}, s57
    s_cbranch_scc1 k2_ovf
    s_buffer_load_dword s60, {s(sL,4)}, {s(sOff0)}
    s_lshr_b32 s58, {s(sOff0)}, 1
    v_mov_b32 {v(vRaw)}, s58
    ds_read_u16 {v(vRaw)}, {v(vRaw)} offset:{L_E}
    s_add_u32 {s(sOff0)}, {s(sOff0)}, 4
    s_waitcnt lgkmcnt(0)
    """)
    safe_edge(60, 61)
    e("s_branch k2_redo")
    c("rare: edges that did not fit their segment; scan the overflow lists of the flagged chunks")
    e(f"""
    k2_ovf:
    v_readfirstlane_b32 s48, {v(vTt)}
    v_readfirstlane_b32 s49, {v(vTt+1)}
    v_readfirstlane_b32 s50, {v(vTt+2)}
    v_readfirstlane_b32 s51, {v(vTt+3)}
    s_add_u32 s52, s32, {WS_OVF}
    s_addc_u32 s53, s33, 0
    s_mov_b32 s54, {WS_OVFC + 1024 - WS_OVF}
    s_mov_b32 s55, 0x20000
    s_mov_b32 s56, 0
    k2_ov_chunk:
    s_and_b32 s57, s48, 1
    s_lshr_b64 s[48:49], s[48:49], 1
    s_lshl_b32 s58, s50, 31
    s_or_b32 s49, s49, s58
    s_lshr_b64 s[50:51], s[50:51], 1
    s_cmp_eq_u32 s57, 0
    s_cbranch_scc1 k2_ov_next
    """)
    e(K1_WG_OF_CHUNK)
    e(f"""
    s_lshl_b32 s58, s57, 2
    s_add_u32 s58, s58, {WS_OVFC - WS_OVF}
    s_buffer_load_dword s59, s[52:55], s58
    s_lshl_b32 s57, s57, 15
    s_waitcnt lgkmcnt(0)
    s_min_u32 s59, s59, {CH*8}
    s_add_u32 s59, s59, s57
    k2_ov_rec:
    s_cmp_ge_u32 s57, s59
    s_cbranch_scc1 k2_ov_next
    s_buffer_load_dwordx2 s[60:61], s[52:55], s57
    s_add_u32 s57, s57, 8
    s_waitcnt lgkmcnt(0)
    s_and_b32 s58, s60, 0xff
    s_cmp_lg_u32 s58, s2
    s_cbranch_scc1 k2_ov_rec
    s_bfe_u32 s58, s61, 0x70005
    s_lshl_b32 s58, s58, 2
    v_mov_b32 {v(vTt)}, s58
    ds_read_b32 {v(vTt+1)}, {v(vTt)} offset:{L_OWN}
    s_waitcnt lgkmcnt(0)
    v_readfirstlane_b32 s62, {v(vTt+1)}
    s_lshr_b32 s63, s62, 3
    s_cmp_lg_u32 s63, {s(sW)}
    s_cbranch_scc1 k2_ov_rec
    v_mov_b32 {v(vTt+1)}, 1
    s_mov_b64 exec, 1
    ds_add_u32 {v(vTt)}, {v(vTt+1)} offset:{L_DEG}
    s_mov_b64 exec, -1
    s_and_b32 s62, s62, 7
    s_lshl_b32 s62, s62, 2
    s_and_b32 s60, s60, 0xfffffe00
    s_or_b32 s60, s60, s62
    s_lshr_b32 s61, s61, 16
    v_mov_b32 {v(vRaw)}, s61
    """)
    safe_edge(60, 61)
    e(f"""
    s_branch k2_ov_rec
    k2_ov_next:
    s_add_u32 s56, s56, 1
    s_cmp_lt_u32 s56, 128
    s_cbranch_scc1 k2_ov_chunk
    k2_epi:
    """)
    vE0 = 4
    c("b2 row for the degree term: lanes < 32 hold b2[32*ot + pi(lane)]")
    e(f"""
    s_and_b32 {s(sT)}, {s(sW)}, 3
    s_lshl_b32 {s(sT2)}, {s(sT)}, 14
    v_add_u32 {v(vE0+11)}, {s(sT2)}, {v(vL16)}
    v_bfe_u32 {v(vE0)}, {v(vLane)}, 2, 1
    v_lshlrev_b32 {v(vE0)}, 5, {v(vE0)}
    v_bfe_u32 {v(vE0+1)}, {v(vLane)}, 3, 2
    v_lshl_add_u32 {v(vE0)}, {v(vE0+1)}, 3, {v(vE0)}
    v_and_b32 {v(vE0+1)}, 3, {v(vLane)}
    v_lshl_add_u32 {v(vE0)}, {v(vE0+1)}, 1, {v(vE0)}
    s_lshl_b32 {s(sT)}, {s(sT)}, 6
    v_add_u32 {v(vE0)}, {s(sT)}, {v(vE0)}
    v_mov_b32 {v(vE0+3)}, 0
    s_mov_b32 exec_hi, 0
    global_load_ushort {v(vE0+3)}, {v(vE0)}, s[30:31]
    s_mov_b64 exec, -1
    s_mov_b32 {s(sSc)}, {f32(-LN2)}
    s_mov_b32 {s(sSc+1)}, {f32(-LN2)}
    """)
    for i in range(7):
        a4 = vN + 4*i
        e(f"""
        s_cmp_eq_u32 {s(nodeS[i])}, 127
        s_cbranch_scc1 k2_hsdone
        v_pk_mul_f32 {v(a4,2)}, {s(sSc,2)}, {v(a4,2)}
        v_pk_mul_f32 {v(a4+2,2)}, {s(sSc,2)}, {v(a4+2,2)}
        s_mul_i32 {s(sT2)}, {s(nodeS[i])}, {HSS}
        s_add_u32 {s(sT2)}, {s(sT2)}, {L_HS}
        v_cvt_pk_bf16_f32 {v(a4)}, {v(a4)}, {v(a4+1)}
        v_cvt_pk_bf16_f32 {v(a4+1)}, {v(a4+2)}, {v(a4+3)}
        v_add_u32 {v(a4+2)}, {s(sT2)}, {v(vL8)}
        ds_write_b64 {v(a4+2)}, {v(a4,2)}
        """)
    e(f"""
    k2_hsdone:
    v_and_b32 {v(vE0+12)}, 31, {v(vLane)}
    s_lshr_b32 {s(sT2)}, {s(sW)}, 2
    s_lshl_b32 {s(sT2)}, {s(sT2)}, 5
    v_add_u32 {v(vE0+4)}, {s(sT2)}, {v(vE0+12)}
    v_lshrrev_b32 {v(vE0+5)}, 5, {v(vLane)}
    v_lshlrev_b32 {v(vE0+7)}, 2, {v(vE0+4)}
    v_min_u32 {v(vE0+4)}, {NPB-1}, {v(vE0+4)}
    v_mul_u32_u24 {v(vE0+4)}, {HSS}, {v(vE0+4)}
    v_lshl_add_u32 {v(vE0+4)}, {v(vE0+5)}, 4, {v(vE0+4)}
    v_add_u32 {v(vE0+4)}, {L_HS}, {v(vE0+4)}
    s_lshl_b32 {s(sT2)}, {s(sT2)}, 8
    s_add_u32 {s(sT)}, {s(sT)}, {s(sT2)}
    v_lshrrev_b32 {v(vE0+6)}, 3, {v(vLane)}
    v_xor_b32 {v(vE0+6)}, {v(vE0+6)}, {v(vLane)}
    v_and_b32 {v(vE0+6)}, 3, {v(vE0+6)}
    v_lshrrev_b32 {v(vE0+13)}, 2, {v(vLane)}
    v_lshlrev_b32 {v(vE0+13)}, 8, {v(vE0+13)}
    v_lshl_add_u32 {v(vE0+6)}, {v(vE0+6)}, 4, {v(vE0+13)}
    v_add_u32 {v(vE0+6)}, {s(sT)}, {v(vE0+6)}
    v_add_u32 {v(vE0+15)}, 4096, {v(vE0+6)}
    s_lshl_b32 {s(sT2)}, {s(sW)}, 11
    s_add_u32 {s(sT)}, {s(sT2)}, {L_TR}
    s_sub_u32 {s(sT2)}, {s(sT2)}, {12*2048 - 4096}
    s_cmp_lt_u32 {s(sW)}, 12
    s_cselect_b32 {s(sT)}, {s(sT)}, {s(sT2)}
    v_add_u32 {v(vE0+14)}, {s(sT)}, {v(vL16)}
    v_bfe_u32 {v(vE0+13)}, {v(vLane)}, 1, 2
    v_lshlrev_b32 {v(vE0+5)}, 1, {v(vE0+5)}
    v_xor_b32 {v(vE0+13)}, {v(vE0+13)}, {v(vE0+5)}
    v_lshlrev_b32 {v(vE0+13)}, 4, {v(vE0+13)}
    v_lshl_add_u32 {v(vE0+12)}, {v(vE0+12)}, 6, {v(vE0+13)}
    v_add_u32 {v(vE0+12)}, {s(sT)}, {v(vE0+12)}
    v_xor_b32 {v(vE0+13)}, 16, {v(vE0+12)}
    s_mul_i32 {s(sT)}, s2, {NPB*256}
    s_add_u32 {s(sX)}, s34, {s(sT)}
    s_addc_u32 {s(sX+1)}, s35, 0
    s_waitcnt lgkmcnt(0)
    """)
    stamp2(12)
    e("s_barrier")
    stamp2(13)
    e(f"ds_read_b32 {v(vE0+7)}, {v(vE0+7)} offset:{L_DEG}")
    vHA, vHB, vO = 24, 56, 88
    def rd(st):
        e(f"ds_read_b128 {v(vHA+4*(st&7),4)}, {v(vE0+11)} offset:{L_W2 + 1024*st}")
        e(f"ds_read_b128 {v(vHB+4*(st&7),4)}, {v(vE0+4)} offset:{32*st}")
    for st in range(7): rd(st)
    e(f"""
    s_waitcnt vmcnt(0) lgkmcnt(14)
    v_lshl_or_b32 {v(vE0+2)}, {v(vE0+3)}, 16, {v(vE0+3)}
    v_cvt_f32_ubyte0 {v(vE0+8)}, {v(vE0+7)}
    v_and_b32 {v(vE0+9)}, 0xff00, {v(vE0+7)}
    v_and_b32 {v(vE0+10)}, 0xff0000, {v(vE0+7)}
    v_cvt_f32_u32 {v(vE0+9)}, {v(vE0+9)}
    v_cvt_f32_u32 {v(vE0+10)}, {v(vE0+10)}
    v_cvt_pk_bf16_f32 {v(vE0+8)}, {v(vE0+8)}, {v(vE0+9)}
    v_lshrrev_b32 {v(vE0+9)}, 16, {v(vE0+10)}
    s_nop 1
    v_mfma_f32_32x32x8_bf16 {v(vO,16)}, {v(vE0+2,2)}, {v(vE0+8,2)}, 0
    """)
    for st in range(16):
        e(f"s_waitcnt lgkmcnt({2*min(6, 15-st)})")
        e(f"v_mfma_f32_32x32x16_bf16 {v(vO,16)}, {v(vHA+4*(st&7),4)}, {v(vHB+4*(st&7),4)}, {v(vO,16)}")
        if st + 7 < 16: rd(st + 7)
    e("s_nop 11")
    for r in range(0, 16, 2):
        e(f"v_cvt_pk_bf16_f32 {v(vO+r//2)}, {v(vO+r)}, {v(vO+r+1)}")
    e(f"""
    ds_write_b128 {v(vE0+12)}, {v(vO,4)}
    ds_write_b128 {v(vE0+13)}, {v(vO+4,4)}
    ds_read_b128 {v(vO+8,4)}, {v(vE0+14)}
    ds_read_b128 {v(vO+12,4)}, {v(vE0+14)} offset:1024
    s_waitcnt lgkmcnt(1)
    buffer_store_dwordx4 {v(vO+8,4)}, {v(vE0+6)}, {s(sX,4)}, 0 offen
    s_waitcnt lgkmcnt(0)
    buffer_store_dwordx4 {v(vO+12,4)}, {v(vE0+15)}, {s(sX,4)}, 0 offen
    """)
    stamp2(14)
    if STAMP:
        e("s_waitcnt vmcnt(0)")
        stamp2(15)
        stamp_out(1, 16, sW)
    e(f"""
    k2_end:
    s_endpgm
    """)

def kd(name, vg, sg):
    return f""".amdhsa_kernel {name}
  .amdhsa_next_free_vgpr {vg}
  .amdhsa_next_free_sgpr {sg}
  .amdhsa_accum_offset {vg}
  .amdhsa_group_segment_fixed_size 0
  .amdhsa_kernarg_size 88
  .amdhsa_user_sgpr_count 2
  .amdhsa_user_sgpr_kernarg_segment_ptr 1
  .amdhsa_system_sgpr_workgroup_id_x 1
.end_amdhsa_kernel"""

hdr = f"""; Edge-featured MPNN: out = segment_sum(silu([x[src], x[dst], e] @ w1 + b1) @ w2 + b2, dst)
; @launch kernel=k1_kernel grid=(256,1,1) block=(1024,1,1) lds={K1_LDS}
; @launch kernel=k2_kernel grid=(256,1,1) block=(1024,1,1) lds={K2_LDS}
.amdgcn_target "amdgcn-amd-amdhsa--gfx950"
.text
"""
out.append(".globl k1_kernel\n.p2align 8\n.type k1_kernel,@function")
gen_k1()
out.append(".globl k2_kernel\n.p2align 8\n.type k2_kernel,@function")
gen_k2()
out.append('.section .rodata,"a"\n.p2align 6')
out.append(kd("k1_kernel", 128, 102))
out.append(".p2align 6")
out.append(kd("k2_kernel", 128, 102))
text = hdr + "\n".join(l for l in out if l.strip() != "") + "\n"
dst = [a for a in sys.argv[1:] if not a.startswith("--")]
open(dst[0] if dst else "standalone__edge_featured_mpnn_mpnn__graph.s", "w").write(text)
```
